```python
import torch

def _softmax(x, axis=-1):
    return torch.softmax(x, dim=axis)
def _gelu(x):
    return torch.nn.functional.gelu(x, approximate="tanh")
def _silu(x):
    return torch.nn.functional.silu(x)
def _sigmoid(x):
    return torch.sigmoid(x)
def _layernorm(x, axis=-1, eps=1e-5):
    m = x.mean(dim=axis, keepdim=True)
    v = x.var(dim=axis, keepdim=True, unbiased=False)
    return (x - m) / torch.sqrt(v + eps)
def _scatter_add(tgt, idx, src, axis=0):
    return tgt.clone().index_add_(axis, idx, src)
def _segment_sum(src, seg, n):
    out = torch.zeros((n,) + src.shape[1:], dtype=src.dtype)
    return out.index_add_(0, seg, src)
def _pad(x, pw):
    flat = tuple(v for pair in reversed(pw) for v in pair)
    return torch.nn.functional.pad(x, flat)

kernel_name = 'recurrent_scan__linear_kernel_hedgehog__dense_activation_silu__prompt'

def setup_inputs():

    _w = (lambda a: (lambda t: t.to(torch.bfloat16) if t.is_floating_point() else t)(torch.as_tensor(a)))
    def _A_setup():
        B, S, D, H = 1, 2048, 576, 32
        Dh = D // H
        return {
            "x": _w((lambda *s: torch.randn(*s, dtype=torch.bfloat16) * 0.05)(B, S, D)),
            "wqkv": _w((lambda *s: torch.randn(*s, dtype=torch.bfloat16) * 0.4)(D, 3 * D)),
            "w_phi": _w((lambda *s: torch.randn(*s, dtype=torch.bfloat16) * 0.4)(H, Dh, Dh) * (Dh ** -0.5)),
            "wo": _w((lambda *s: torch.randn(*s, dtype=torch.bfloat16) * 0.2)(D, D)),
        }
    _A_in = _A_setup()

    def _B_setup():
        B, S, D, F = 1, 2048, 576, 4608
        return {
            "x": _w((lambda *s: torch.randn(*s, dtype=torch.bfloat16) * 0.05)(B, S, D)),
            "w1": _w((lambda *s: torch.randn(*s, dtype=torch.bfloat16) * 0.4)(D, F) * (D ** -0.5)),
            "w2": _w((lambda *s: torch.randn(*s, dtype=torch.bfloat16) * 0.1)(F, D) * (F ** -0.5)),
        }
    _B_in = _B_setup()

    return {
        "A_x": _A_in["x"],
        "A_wqkv": _A_in["wqkv"],
        "A_w_phi": _A_in["w_phi"],
        "A_wo": _A_in["wo"],
        "B_x": _B_in["x"],
        "B_w1": _B_in["w1"],
        "B_w2": _B_in["w2"],
    }

def reference(A_x, A_wqkv, A_w_phi, A_wo, B_x, B_w1, B_w2):
    def _A_ref(x, wqkv, w_phi, wo):
        B, S, D = x.shape
        H = 32; Dh = D // H
        qkv = (lambda x, *d: x.permute(*d))((x @ wqkv).reshape(B, S, 3, H, Dh), 2, 0, 3, 1, 4)
        q, k, v = qkv[0], qkv[1], qkv[2]
        pq = torch.einsum("bhsd,hdf->bhsf", q, w_phi)
        pk = torch.einsum("bhsd,hdf->bhsf", k, w_phi)
        phi_q = torch.concatenate([_softmax(pq, axis=-1), _softmax(-pq, axis=-1)], axis=-1)
        phi_k = torch.concatenate([_softmax(pk, axis=-1), _softmax(-pk, axis=-1)], axis=-1)
        kv = torch.einsum("bhsf,bhsd->bhfd", phi_k, v)
        z  = torch.einsum("bhsf->bhf", phi_k)
        num = torch.einsum("bhqf,bhfd->bhqd", phi_q, kv)
        den = torch.einsum("bhqf,bhf->bhq", phi_q, z)[..., None] + 1e-6
        o = num / den
        return (lambda x, *d: x.permute(*d))(o, 0, 2, 1, 3).reshape(B, S, D) @ wo

    def _B_ref(x, w1, w2):
        h = torch.einsum("bsd,df->bsf", x, w1)
        h = _silu(h)
        out = torch.einsum("bsf,fd->bsd", h, w2)
        return out

    x = A_x
    xn = _layernorm(x, axis=-1)
    s = _A_ref(xn, A_wqkv, A_w_phi, A_wo)
    g = _silu(_B_ref(xn, B_w1, B_w2))
    return x + s * g
```

```python
import re

_REG = re.compile(r'^(-?)(?:abs\()?([vas])(?:\[(\d+):(\d+)\]|(\d+))\)?$')

def regs_of(op):
    op = op.strip()
    if op in ('vcc', 'exec', 'm0', 'scc'):
        return [op]
    if op in ('vcc_lo', 'vcc_hi'): return ['vcc']
    if op in ('exec_lo', 'exec_hi'): return ['exec']
    m = _REG.match(op)
    if not m: return []
    k = m.group(2)
    if m.group(5) is not None:
        return [k + m.group(5)]
    return [k + str(i) for i in range(int(m.group(3)), int(m.group(4)) + 1)]

TRANS = ('v_exp_f32', 'v_rcp_f32', 'v_rsq_f32', 'v_sqrt_f32', 'v_log_f32', 'v_sin_f32', 'v_cos_f32', 'v_rcp_iflag_f32')

class Ins:
    __slots__ = ('text', 'op', 'kind', 'w', 'r', 'srcC', 'srcAB', 'nws', 'data', 'sbytes')
    def __init__(self, text):
        self.text = text
        t = text.split(';')[0].strip()
        self.w = []; self.r = []; self.srcC = []; self.srcAB = []; self.data = []
        self.nws = 1
        if t.endswith(':') or t.startswith('.') or not t:
            self.op = 'label' if t.endswith(':') else 'directive'; self.kind = self.op; self.nws = 0
            return
        parts = t.split(None, 1)
        op = parts[0]; self.op = op
        rest = parts[1] if len(parts) > 1 else ''
        ops = []; cur = ''; depth = 0
        for ch in rest:
            if ch == '[': depth += 1
            if ch == ']': depth -= 1
            if ch == ',' and depth == 0: ops.append(cur.strip()); cur = ''
            else: cur += ch
        if cur.strip(): ops.append(cur.strip())
        mods = []
        if ops:
            sp = ops[-1].split()
            ops[-1] = sp[0]; mods = sp[1:]
        R = [regs_of(o) for o in ops]
        flat = lambda xs: [y for x in xs for y in x]
        if op.startswith('v_mfma'):
            self.kind = 'mfma'; self.w = R[0]; self.srcAB = R[1] + R[2]; self.srcC = R[3]; self.r = self.srcAB + self.srcC
        elif op.startswith('v_cmp'):
            self.kind = 'valu'; self.w = R[0]; self.r = flat(R[1:])
            if op.startswith('v_cmpx'): self.w = self.w + ['exec']
        elif op.startswith('v_permlane') and 'swap' in op:
            self.kind = 'valu'; self.w = R[0] + R[1]; self.r = R[0] + R[1]
        elif op.startswith('v_readfirstlane') or op.startswith('v_readlane'):
            self.kind = 'valu'; self.w = R[0]; self.r = flat(R[1:])
        elif op.startswith('v_'):
            base = op.replace('_e32', '').replace('_e64', '')
            self.kind = 'trans' if base in TRANS else 'valu'
            self.w = R[0]; self.r = flat(R[1:])
            if base.startswith(('v_fmac', 'v_dot2c', 'v_pk_fmac')): self.r = self.r + R[0]
            if base.startswith(('v_add_co', 'v_sub_co', 'v_addc_co', 'v_subb_co')): self.w = R[0] + R[1]; self.r = flat(R[2:])
            if base == 'v_cndmask_b32' and len(ops) == 3: self.r = self.r + ['vcc']
        elif op.startswith('ds_read') or op.startswith('ds_bpermute') or op.startswith('ds_swizzle'):
            self.kind = 'ds'; self.w = R[0]; self.r = flat(R[1:])
        elif op.startswith('ds_'):
            self.kind = 'ds'; self.r = flat(R)
        elif op.startswith('buffer_load') or op.startswith('global_load'):
            self.kind = 'vmem'
            if 'lds' in mods: self.r = flat(R) + ['m0']; self.kind = 'vmem_lds'
            else: self.w = R[0]; self.r = flat(R[1:])
        elif op.startswith('buffer_store') or op.startswith('buffer_atomic'):
            self.kind = 'vmem'; self.r = flat(R); self.data = R[0] if len(R[0]) >= 3 else []
            if op.startswith('buffer_atomic') and 'sc0' in mods: self.w = R[0][:1]
        elif op.startswith('global_store') or op.startswith('global_atomic'):
            self.kind = 'vmem'; self.r = flat(R); self.data = R[1] if len(R[1]) >= 3 else []
        elif op.startswith('buffer_'):
            self.kind = 'vmem_other'
        elif op == 's_nop':
            self.kind = 'nop'; self.nws = int(ops[0], 0) + 1
        elif op.startswith('s_load') or op.startswith('s_memtime') or op.startswith('s_memrealtime'):
            self.kind = 'smem'; self.w = R[0]; self.r = flat(R[1:])
        elif op.startswith(('s_cbranch', 's_branch', 's_endpgm', 's_setpc', 's_swappc')):
            self.kind = 'branch'
        elif op.startswith(('s_waitcnt', 's_barrier', 's_sleep', 's_setprio')):
            self.kind = 'sctl'
        elif op.startswith('s_cmp') or op.startswith('s_bitcmp'):
            self.kind = 'salu'; self.r = flat(R); self.w = ['scc']
        elif op.startswith('s_'):
            self.kind = 'salu'; self.w = R[0] if R else []; self.r = flat(R[1:])
            if 'saveexec' in op: self.w = self.w + ['exec']
        else:
            raise ValueError('unknown instruction: ' + text)

def mfma_passes(op):
    if '32x32x16' in op: return 8
    if '16x16x32' in op: return 4
    raise ValueError(op)

def required_ws(p, c):
    need = 0
    pw = set(p.w); cr = set(c.r); cw = set(c.w)
    isvalu = lambda i: i.kind in ('valu', 'trans')
    if p.kind == 'mfma':
        n = mfma_passes(p.op)
        big = {4: 8, 8: 12}[n]; ovl = {4: 6, 8: 10}[n]; war = {4: 3, 8: 7}[n]
        if c.kind == 'mfma':
            if pw & set(c.srcAB): need = max(need, big)
            if pw & set(c.srcC):
                if not (list(p.w) == list(c.srcC) and mfma_passes(c.op) == n): need = max(need, ovl)
            elif pw & cw:
                need = max(need, ovl)
        else:
            if (pw & cr) or (pw & cw): need = max(need, big)
            if isvalu(c) and (set(p.srcC) & cw): need = max(need, war)
    if isvalu(p):
        vw = {x for x in pw if x[0] in 'va' and x not in ('vcc',)}
        sw = {x for x in pw if x[0] == 's' or x == 'vcc'}
        if c.kind == 'mfma' and (vw & cr): need = max(need, 2)
        if c.kind == 'mfma' and 'exec' in pw: need = max(need, 4)
        if c.op.startswith('v_permlane') and (vw & cr): need = max(need, 2)
        if (c.op.startswith('v_readfirstlane') or c.op.startswith('v_readlane')) and (vw & cr): need = max(need, 1)
        if ('dpp' in c.op or 'row_' in c.text or 'quad_perm' in c.text) and (vw & cr): need = max(need, 2)
        if p.kind == 'trans' and isvalu(c) and (vw & cr): need = max(need, 1)
        if p.kind == 'trans' and c.kind in ('vmem', 'ds') and (vw & cr): need = max(need, 1)
        if c.kind in ('vmem', 'vmem_lds') and (sw & cr): need = max(need, 5)
        if isvalu(c) and (sw & cr): need = max(need, 2)
        if c.kind in ('salu', 'branch', 'smem') and (sw & cr): need = max(need, 2)
        if p.op.startswith('v_dot2') and (vw & (cr | cw)):
            if not (c.op == p.op and not (vw & set(c.r[:-1] if c.op.startswith('v_dot2c') or True else []))):
                need = max(need, 3)
        if 'sdwa' in p.op or 'dst_sel' in p.text:
            if isvalu(c) and (vw & cr): need = max(need, 1)
    if p.kind == 'salu' and 'm0' in pw and c.kind == 'vmem_lds': need = max(need, 1)
    if p.kind == 'vmem' and p.data and (set(p.data) & cw): need = max(need, 2)
    return need

class Em:
    def __init__(self):
        self.ins = []
        self.vm_n = 0
        self.lg_n = 0
        self.vm_done = 0
        self.lg_done = 0
    def __call__(self, text):
        for line in text.split('\n'):
            if not line.strip(): continue
            i = Ins(line.strip())
            self.ins.append(i)
            if i.kind in ('vmem', 'vmem_lds'): self.vm_n += 1
            if i.kind == 'ds': self.lg_n += 1
        return self
    def vm_tok(self): return self.vm_n
    def lg_tok(self): return self.lg_n
    def wait(self, vm=None, lg=None):
        parts = []
        if vm is not None and vm > self.vm_done:
            n = self.vm_n - vm
            n = min(n, 63)
            parts.append(f'vmcnt({n})'); self.vm_done = self.vm_n - n
        if lg is not None and lg > self.lg_done:
            n = min(self.lg_n - lg, 15)
            parts.append(f'lgkmcnt({n})'); self.lg_done = self.lg_n - n
        if parts: self('s_waitcnt ' + ' '.join(parts))
    def wait_all(self, vm=True, lg=True):
        parts = []
        if vm: parts.append('vmcnt(0)'); self.vm_done = self.vm_n
        if lg: parts.append('lgkmcnt(0)'); self.lg_done = self.lg_n
        self('s_waitcnt ' + ' '.join(parts))
    def fix_hazards(self, verbose=False):
        out = []
        nins = 0
        for c in self.ins:
            if c.kind in ('label', 'directive'):
                out.append(c); continue
            dist = 0; need = 0
            for p in reversed(out):
                if p.kind in ('label', 'directive'): continue
                if dist >= 20: break
                r = required_ws(p, c)
                if r - dist > need:
                    need = r - dist; why = p
                dist += p.nws
            if need > 0:
                if verbose: print(f'  hazard: {need} ws before "{c.text}" (producer "{why.text}")')
                nins += 1
                while need > 0:
                    k = min(need, 16)
                    out.append(Ins(f's_nop {k-1}')); need -= k
            out.append(c)
        self.ins = out
        return nins
    def text(self):
        return '\n'.join(('' if i.kind == 'label' else '    ') + i.text for i in self.ins) + '\n'

def cost(text):
    i = Ins(text)
    if i.kind == 'trans' or i.op.startswith('v_permlane'): return 8
    if i.kind == 'ds': return 8
    if i.kind == 'valu':
        b = i.op
        if b.startswith(('v_pk_', 'v_cvt_pk', 'v_fma_', 'v_max3', 'v_min3', 'v_dot2_', 'v_accvgpr', 'v_perm', 'v_mul_lo', 'v_mad', 'v_add3', 'v_lshl_', 'v_bfe', 'v_and_or', 'v_add_lshl', 'v_cndmask')): return 5
        return 4
    return 4
```

```python
from asmlib import *
from engine import *
from collections import defaultdict

def attn_path(e, xs, G):
    srd, X, X0, ACC0, TMP, vLANE, vL16, f32 = G.srd, G.X, G.X0, G.ACC0, G.TMP, G.vLANE, G.vL16, G.f32
    sWAVE, sTILE, sSG, sLDSW, sB1, sB2, sSOFF, sSLAB, sST, sXOFF = G.sWAVE, G.sTILE, G.sSG, G.sLDSW, G.sB1, G.sB2, G.sSOFF, G.sSLAB, G.sST, G.sXOFF
    sT0, sT1, sT2, sT3 = G.sT0, G.sT1, G.sT2, G.sT3
    S_WQKV, S_WPHI, S_WO, S_WS, S_DBG = G.S_WQKV, G.S_WPHI, G.S_WO, G.S_WS, G.S_DBG
    stamp = G.stamp
    sKV = G.sPF2
    KVP, KVH = 192, 3840
    vQ = [2, 3, 4, 5, 6]
    vT = [8, 9, 10]
    FR = 0
    WPH = 48
    KP = 132
    VA = 168
    t = TMP + 16

    e(f's_mul_i32 s{sKV}, s{sSG}, {8*KVH}')
    e(f's_add_u32 s{sKV}, s{sKV}, {G.WS_KV}')
    e(f's_mul_i32 s{sT0}, s{sTILE}, 1920')
    e(f's_add_u32 s{sT0}, s{sT0}, s{sKV}')
    for i in range(4): e(f'v_mov_b32 v{t+i}, 0')
    e(f'v_min_u32 v{t+4}, 119, v0')
    e(f'v_lshlrev_b32 v{t+4}, 4, v{t+4}')
    e(f'buffer_store_dwordx4 v[{t}:{t+3}], v{t+4}, {srd(S_WS)}, s{sT0} offen sc1')
    ztok = e.vm_tok()
    for i in range(5):
        e(f'v_add_u32 v{t+5}, {64*i}, v{vLANE}')
        e(f'v_mul_u32_u24 v{t+6}, {(1 << 16)//20 + 1}, v{t+5}')
        e(f'v_lshrrev_b32 v{t+6}, 16, v{t+6}')
        e(f'v_mul_u32_u24 v{t+7}, 20, v{t+6}')
        e(f'v_sub_u32 v{t+5}, v{t+5}, v{t+7}')
        e(f'v_mul_u32_u24 v{vQ[i]}, 3456, v{t+6}')
        e(f'v_bfe_u32 v{t+6}, v{t+5}, 1, 1')
        e(f'v_mul_u32_u24 v{t+6}, 144, v{t+6}')
        e(f'v_add_u32 v{vQ[i]}, v{vQ[i]}, v{t+6}')
        e(f'v_lshrrev_b32 v{t+6}, 2, v{t+5}')
        e(f'v_and_b32 v{t+5}, 1, v{t+5}')
        e(f'v_lshl_add_u32 v{t+5}, v{t+6}, 1, v{t+5}')
        e(f'v_min_u32 v{t+5}, 8, v{t+5}')
        e(f'v_lshl_add_u32 v{vQ[i]}, v{t+5}, 4, v{vQ[i]}')
        if 0 < i < 4: e(f'v_subrev_u32 v{vQ[i]}, {1024*i}, v{vQ[i]}')
    def lane_addr(dst, A, B, C, D, E_, tmp):
        e(f'v_lshrrev_b32 v{tmp}, 5, v{vLANE}')
        e(f'v_mul_u32_u24 v{dst}, {A}, v{tmp}')
        for (sh, w, k) in ((2, 2, B), (0, 1, C), (4, 1, D), (1, 1, E_)):
            if k == 0: continue
            e(f'v_bfe_u32 v{tmp}, v{vLANE}, {sh}, {w}')
            e(f'v_mul_u32_u24 v{tmp}, {k}, v{tmp}')
            e(f'v_add_u32 v{dst}, v{dst}, v{tmp}')
    lane_addr(vT[0], 32*320, 320, 32, 16, 8, t+5)
    e(f'v_add_u32 v{vT[1]}, 65536, v{vT[0]}')
    e(f'v_add_u32 v{vT[2]}, 131072, v{vT[0]}')
    e(f's_mul_i32 s{sB1}, s{sWAVE}, {16*3456}')
    e(f's_mul_i32 s{sT0}, s{sSG}, 288')
    e(f's_add_u32 s{sB1}, s{sB1}, s{sT0}')
    e(f's_mul_i32 s{sLDSW}, s{sWAVE}, 5120')
    e(f's_add_u32 s{sT0}, s{sSG}, 12')
    e(f's_mul_i32 s{sSLAB}, s{sT0}, {G.SLAB_BYTES}')
    e(f's_add_u32 s{sSLAB}, s{sSLAB}, s{sXOFF}')

    ring = Ring(e)
    def qkv_stage(addr, sec, kb):
        items = [[f's_add_u32 m0, s{sLDSW}, {addr}', f's_add_u32 s{sSOFF}, s{sB1}, {kb*64*3456 + sec*1152}']]
        for i in range(4):
            items.append([f'buffer_load_dwordx4 v{vQ[i]}, {srd(S_WQKV)}, s{sSOFF} offen offset:{1024*i} lds'])
        items.append([f's_add_u32 m0, s{sLDSW}, {addr + 4096}', 's_nop 0', f'buffer_load_dwordx4 v{vQ[4]}, {srd(S_WQKV)}, s{sSOFF} offen lds'])
        return Stage(addr, 20480, items, f'qkv{sec} kb{kb}')
    SZ = 20480
    PHI = 81920; PHP = 592
    VB = 0; VP = 336
    MIMG = 126976
    kst = [ring.add(qkv_stage((kb % 4) * SZ, 1, kb)) for kb in range(9)]
    vst = [ring.add(qkv_stage(((kb + 9) % 4) * SZ, 2, kb)) for kb in range(9)]
    qaddr = [43008, 43008 + SZ - 2048 + 2048]
    qaddr = [40960 + 2048, 61440]
    qslots = [61440, 81920, 102400, 122880, 0, 20480, 40960]
    qst = []
    for kb in range(9):
        qst.append(ring.add(qkv_stage(qslots[kb % 7], 0, kb)))

    ring.reserved = [(G.XA + 67584, G.XEND)]
    e.wait(vm=ztok)
    ring.barrier()
    e(f's_cmp_lg_u32 s{sWAVE}, 0')
    e('s_cbranch_scc1 L_z1')
    e(f'v_mov_b32 v{t}, 1')
    e(f'v_mov_b32 v{t+1}, 0')
    e(f's_lshl_b32 s{sT0}, s{sSG}, 2')
    e('s_mov_b64 exec, 1')
    e(f'buffer_atomic_add v{t}, v{t+1}, {srd(S_DBG)}, s{sT0} offen')
    e.vm_n -= 1
    e('s_mov_b64 exec, -1')
    e('s_waitcnt vmcnt(0)')
    e('L_z1:')
    stamp(e, 'barrier1')
    G.ln_finish(e, xs, ring)
    ring.reserved = [(MIMG, 163840)]
    stamp(e, 'stats done')

    def section(stages, acck, acc0):
        mf = []
        for ks in range(36):
            kb, v = divmod(ks, 4)
            st = stages[kb]
            for T in range(5):
                off = ring.stages[st].addr + 8*v*320 + 64*T
                a = acc0 + 16*T
                mf.append(dict(stage=st, reads=G.tr_reads(vT, off, 4*320), b=X(ks), acc=f'{acck}[{a}:{a+15}]', first=(ks == 0)))
        return mf

    gap = defaultdict(list)
    pre = G.add_norm(e, gap, 5, TMP + 16)
    W = TMP + 24
    wl = [7, 11, 12, 13, 15, 0]
    z = []
    z += [f'v_mov_b32 v{W+i}, 0' for i in range(4)]
    z += [f'v_lshlrev_b32 v{wl[0]}, 4, v0']
    for i in range(9):
        if i == 8: z.append(f'v_min_u32 v{wl[0]}, {111*16}, v{wl[0]}')
        z.append(f'v_add_u32 v{wl[1]}, {MIMG + 4096*i}, v{wl[0]}')
        z.append(f'ds_write_b128 v{wl[1]}, v[{W}:{W+3}]')
    spread(gap, z, 2, 12)
    ld = [f's_mul_i32 s{sT0}, s{sSG}, {8*648}']
    for i in range(6):
        ld.append(f'v_add_u32 v{W}, {256*i}, v0')
        ld.append(f'v_min_u32 v{W}, 1295, v{W}')
        ld.append(f'v_mul_u32_u24 v{W+1}, {(1 << 16)//9 + 1}, v{W}')
        ld.append(f'v_lshrrev_b32 v{W+1}, 16, v{W+1}')
        ld.append(f'v_mul_u32_u24 v{W+2}, {(1 << 16)//18 + 1}, v{W+1}')
        ld.append(f'v_bfe_u32 v{W+2}, v{W+2}, 16, 2')
        ld.append(f'v_mul_u32_u24 v{W+2}, 36, v{W+2}')
        ld.append(f'v_mul_u32_u24 v{W+1}, 124, v{W+1}')
        ld.append(f'v_lshlrev_b32 v{W}, 2, v{W}')
        ld.append(f'v_add3_u32 v{W+1}, v{W}, v{W+1}, v{W+2}')
        ld.append(f'v_add_u32 v{W+1}, {MIMG}, v{W+1}')
        ld.append(f'v_accvgpr_write_b32 a{248+i}, v{W+1}')
        ld.append(f'buffer_load_dword v{wl[i]}, v{W}, {srd(S_WPHI)}, s{sT0} offen')
    st_ = {}
    ld.append((lambda: st_.__setitem__('wl', e.vm_tok()), 0))
    spread(gap, ld, 14, 40)
    sc = [(lambda: e.wait(vm=st_['wl']), 4)]
    for i in range(6):
        sc.append(f'v_accvgpr_read_b32 v{W+(i%2)}, a{248+i}')
        sc.append(f'ds_write_b32 v{W+(i%2)}, v{wl[i]}')
    spread(gap, sc, 76, 86)
    vM = 7
    ad = []
    class Rec:
        def __call__(self, x): ad.append(x)
    e_saved = e
    def lane_addr_ops(dst, A, B, C, D, E_, tmp):
        ops = [f'v_lshrrev_b32 v{tmp}, 5, v{vLANE}', f'v_mul_u32_u24 v{dst}, {A}, v{tmp}']
        for (sh, w, k) in ((2, 2, B), (0, 1, C), (4, 1, D), (1, 1, E_)):
            if k == 0: continue
            ops += [f'v_bfe_u32 v{tmp}, v{vLANE}, {sh}, {w}', f'v_mul_u32_u24 v{tmp}, {k}, v{tmp}', f'v_add_u32 v{dst}, v{dst}, v{tmp}']
        return ops
    ad += lane_addr_ops(vM, 0, 160, 0, 16, 8, W)
    ad += [f'v_lshrrev_b32 v{W}, 5, v{vLANE}', f'v_and_b32 v{W+1}, 1, v{vLANE}', f'v_cmp_eq_u32 vcc, v{W}, v{W+1}',
           f'v_mul_u32_u24 v{W}, 11520, v{W}', f'v_mov_b32 v{W+1}, {2*11520}', f'v_cndmask_b32 v{W}, v{W+1}, v{W}, vcc',
           f'v_add_u32 v{vM}, v{vM}, v{W}', f'v_add_u32 v{vM}, {MIMG}, v{vM}']
    spread(gap, ad, 88, 100)
    pairs = [(T, s) for T, ss in enumerate([range(0, 3), range(0, 5), range(2, 7), range(4, 9), range(6, 9)]) for s in ss]
    assert len(pairs) == 21
    rdw = []
    for n, (T, s) in enumerate(pairs):
        for rd in range(2):
            rdw.append(f'ds_read_b64_tr_b16 a[{WPH+4*n+2*rd}:{WPH+4*n+2*rd+1}], v{vM} offset:{(8*s+4*rd)*160 + 32*T}')
    for i, x in enumerate(rdw): gap[116 + i].insert(0, x)
    run_stream(e, ring, section(kst, 'v', ACC0), gap, FR, pre=pre)
    stamp(e, 'K gemm')

    def pack_proj(full=True):
        for i in range(36):
            e(f'v_cvt_pk_bf16_f32 v{TMP+16+(i%4)}, v{ACC0+2*i}, v{ACC0+2*i+1}')
            e(f'v_accvgpr_write_b32 a{KP+i}, v{TMP+16+(i%4)}')
            if i % 6 == 5: ring.pump(1)
        e.wait(lg=e.lg_tok())
        seen = set()
        order = sorted(range(21), key=lambda n: (pairs[n][1] - [0, 0, 2, 4, 6][pairs[n][0]], pairs[n][0]))
        for n in order:
            T, s = pairs[n]
            d = f'v[{ACC0+16*T}:{ACC0+16*T+15}]'
            e(f'v_mfma_f32_32x32x16_bf16 {d}, a[{WPH+4*n}:{WPH+4*n+3}], a[{KP+4*s}:{KP+4*s+3}], {d if T in seen else 0}')
            seen.add(T)
            ring.pump(1)

    def softmax_ops(a, dst, T1, S):
        p = ACC0 + 18*a
        ops = []
        mx, mn, sp, sn = S, S+2, S+4, S+4
        ops.append(f'v_max3_f32 v{mx}, v{p}, v{p+1}, v{p+2}')
        ops.append(f'v_min3_f32 v{mn}, v{p}, v{p+1}, v{p+2}')
        for i in range(3, 17, 2):
            ops.append(f'v_max3_f32 v{mx}, v{mx}, v{p+i}, v{p+i+1}')
            ops.append(f'v_min3_f32 v{mn}, v{mn}, v{p+i}, v{p+i+1}')
        ops.append(f'v_max_f32 v{mx}, v{mx}, v{p+17}')
        ops.append(f'v_min_f32 v{mn}, v{mn}, v{p+17}')
        for i in range(0, 18, 2):
            ops.append(f'v_pk_add_f32 v[{T1+i}:{T1+i+1}], v[{p+i}:{p+i+1}], v[{mx}:{mx+1}] op_sel_hi:[1,0] neg_lo:[0,1] neg_hi:[0,1]')
            ops.append(f'v_pk_add_f32 v[{p+i}:{p+i+1}], v[{p+i}:{p+i+1}], v[{mn}:{mn+1}] op_sel_hi:[1,0] neg_lo:[1,0] neg_hi:[1,0]')
        for i in range(18):
            ops.append(f'v_exp_f32 v{T1+i}, v{T1+i}')
            ops.append(f'v_exp_f32 v{p+i}, v{p+i}')
        ops.append(f'v_pk_add_f32 v[{mx}:{mx+1}], v[{T1}:{T1+1}], v[{T1+2}:{T1+3}]')
        ops.append(f'v_pk_add_f32 v[{mn}:{mn+1}], v[{p}:{p+1}], v[{p+2}:{p+3}]')
        for i in range(4, 18, 2):
            ops.append(f'v_pk_add_f32 v[{mx}:{mx+1}], v[{mx}:{mx+1}], v[{T1+i}:{T1+i+1}]')
            ops.append(f'v_pk_add_f32 v[{mn}:{mn+1}], v[{mn}:{mn+1}], v[{p+i}:{p+i+1}]')
        ops.append(f'v_add_f32 v{mx}, v{mx}, v{mx+1}')
        ops.append(f'v_add_f32 v{mn}, v{mn}, v{mn+1}')
        ops.append(f'v_rcp_f32 v{mx}, v{mx}')
        ops.append(f'v_rcp_f32 v{mn}, v{mn}')
        ops.append('s_nop 0')
        for i in range(0, 18, 2):
            ops.append(f'v_pk_mul_f32 v[{T1+i}:{T1+i+1}], v[{T1+i}:{T1+i+1}], v[{mx}:{mx+1}] op_sel_hi:[1,0]')
            ops.append(f'v_pk_mul_f32 v[{p+i}:{p+i+1}], v[{p+i}:{p+i+1}], v[{mn}:{mn+1}] op_sel_hi:[1,0]')
        return ops, p

    pack_proj()
    stamp(e, 'proj k')
    ring.reserved = [(PHI, 163840)]
    gap = defaultdict(list)
    T1 = ACC0 + 72
    S = ACC0 + 90
    vPW = 7
    ops = [f'v_and_b32 v{S}, 31, v{vLANE}', f's_lshl_b32 s{sT0}, s{sWAVE}, 5', f'v_add_u32 v{S}, s{sT0}, v{S}',
           f'v_mul_u32_u24 v{vPW}, {PHP}, v{S}', f'v_mul_u32_u24 v11, {VP}, v{S}', f'v_lshrrev_b32 v{S}, 5, v{vLANE}',
           f'v_mul_u32_u24 v{S+1}, 288, v{S}', f'v_add_u32 v{vPW}, v{vPW}, v{S+1}', f'v_add_u32 v{vPW}, {PHI}, v{vPW}',
           f'v_mul_u32_u24 v{S+1}, 160, v{S}', f'v_add_u32 v11, v11, v{S+1}']
    for a in range(4):
        o, p = softmax_ops(a, None, T1, S)
        ops += o
        for m in range(9): ops.append(f'v_cvt_pk_bf16_f32 v{T1+m}, v{T1+2*m}, v{T1+2*m+1}')
        for m in range(9): ops.append(f'v_cvt_pk_bf16_f32 v{T1+9+m}, v{p+2*m}, v{p+2*m+1}')
        off = 72*a
        m = 0
        if off % 16:
            ops.append(f'ds_write_b64 v{vPW}, v[{T1}:{T1+1}] offset:{off}'); m = 2
        while m + 4 <= 18:
            ops.append(f'ds_write_b128 v{vPW}, v[{T1+m}:{T1+m+3}] offset:{off+4*m}'); m += 4
        if m < 18:
            ops.append(f'ds_write_b64 v{vPW}, v[{T1+m}:{T1+m+1}] offset:{off+4*m}')
    spread(gap, ops, 1, 176)
    mfv = section(vst, 'a', VA)
    run_stream(e, ring, mfv, gap, FR)
    stamp(e, 'V gemm')
    ring.reserved = [(PHI, 163840), (VB, VB + 128*VP)]
    ring.barrier()
    B = ACC0
    for a in range(4):
        for m in range(9):
            i = 18*a + 2*m
            e(f'v_accvgpr_read_b32 v{T1+(2*m)%8}, a{VA+i}')
            e(f'v_accvgpr_read_b32 v{T1+(2*m)%8+1}, a{VA+i+1}')
            e(f'v_cvt_pk_bf16_f32 v{B+10*a+m}, v{T1+(2*m)%8}, v{T1+(2*m)%8+1}')
        e(f'v_mov_b32 v{B+10*a+9}, 0x3f80')
        ring.pump(2)
    for i in range(10):
        e(f'ds_write_b128 v11, v[{B+4*i}:{B+4*i+3}] offset:{VB + 16*i}')
    vB0, vB1, vL0, vL1, vA0 = 7, 11, 12, 13, 15
    tt = T1
    e(f's_mul_i32 s{sT0}, s{sWAVE}, 144')
    e(f's_add_u32 s{sT0}, s{sT0}, {PHI}')
    e(f's_mul_i32 s{sT1}, s{sWAVE}, 80')
    for x in lane_addr_ops(tt+1, 2*PHP, 4*PHP, 0, 0, 0, tt): e(x)
    e(f'v_add_u32 v{tt+1}, s{sT0}, v{tt+1}')
    e(f'v_bfe_u32 v{tt+2}, v{vLANE}, 4, 1')
    e(f'v_and_b32 v{tt+3}, 3, v{vLANE}')
    e(f'v_lshl_add_u32 v{tt+2}, v{tt+2}, 2, v{tt+3}')
    e(f'v_lshl_add_u32 v{vL0}, v{tt+2}, 3, v{tt+1}')
    e(f'v_and_b32 v{tt+3}, 1, v{tt+2}')
    e(f'v_mul_u32_u24 v{tt+3}, 72, v{tt+3}')
    e(f'v_add3_u32 v{tt+4}, v{tt+1}, v{tt+3}, 64')
    for x in lane_addr_ops(tt+5, 2*VP, 4*VP, 0, 0, 0, tt): e(x)
    e(f'v_min_u32 v{tt+2}, 4, v{tt+2}')
    e(f'v_lshl_add_u32 v{tt+5}, v{tt+2}, 3, v{tt+5}')
    e(f'v_add_u32 v{vA0}, s{sT1}, v{tt+5}')
    e.wait(lg=e.lg_tok())
    e(f'v_mov_b32 v{vB0}, v{vL0}')
    e(f'v_add_u32 v{vB1}, {64*PHP}, v{vL0}')
    e(f'v_mov_b32 v{vL0}, v{tt+4}')
    e(f'v_add_u32 v{vL1}, {64*PHP}, v{tt+4}')
    e(f's_lshl_b32 s{sT2}, s{sSG}, 2')
    e(f'v_mov_b32 v{tt+6}, 0')
    e(f'buffer_load_dword v{tt+7}, v{tt+6}, {srd(S_DBG)}, s{sT2} offen sc1')
    zp = e.vm_tok()
    ring.barrier()
    stamp(e, 'v written')
    OP = VA
    toks = {}
    def kv_reads(s):
        o = OP + 20*(s % 4)
        hi = s >= 4
        for rd in range(2):
            for h in range(2):
                e(f'ds_read_b64_tr_b16 a[{o+4*h+2*rd}:{o+4*h+2*rd+1}], v{vA0} offset:{VB + (16*s+rd)*VP + 40*h}')
                e(f'ds_read_b64_tr_b16 a[{o+8+4*h+2*rd}:{o+8+4*h+2*rd+1}], v{vB1 if hi else vB0} offset:{(16*(s%4)+rd)*PHP + 72*h}')
            e(f'ds_read_b64_tr_b16 a[{o+16+2*rd}:{o+16+2*rd+1}], v{vL1 if hi else vL0} offset:{(16*(s%4)+rd)*PHP}')
        toks[s] = e.lg_tok()
    kv_reads(0); kv_reads(1)
    for s in range(8):
        e.wait(lg=toks[s])
        o = OP + 20*(s % 4)
        for h in range(2):
            for part in range(2):
                d = ACC0 + 32*h + 16*part
                b = o + 8 + 4*h if part == 0 else o + 16
                e(f'v_mfma_f32_32x32x16_bf16 v[{d}:{d+15}], a[{o+4*h}:{o+4*h+3}], a[{b}:{b+3}], {0 if s == 0 else f"v[{d}:{d+15}]"}')
            if h == 0 and s + 2 < 8: kv_reads(s + 2)
    ring.reserved = []
    ring.barrier()
    stamp(e, 'kv mfma')
    e.wait(vm=zp)
    e(f'v_readfirstlane_b32 s{sT3}, v{tt+7}')
    e(f's_cmp_eq_u32 s{sT3}, 16')
    e('s_cbranch_scc1 L_zok')
    e('L_zspin:')
    e('s_sleep 1')
    e(f'buffer_load_dword v{tt+7}, v{tt+6}, {srd(S_DBG)}, s{sT2} offen sc1'); e.vm_n -= 1
    e('s_waitcnt vmcnt(0)')
    e(f'v_readfirstlane_b32 s{sT3}, v{tt+7}')
    e(f's_cmp_eq_u32 s{sT3}, 16')
    e('s_cbranch_scc0 L_zspin')
    e('L_zok:')
    ring.pump(12)
    va, vl = tt, tt+1
    e(f'v_lshrrev_b32 v{tt+2}, 5, v{vLANE}')
    e(f'v_mul_u32_u24 v{tt+2}, {4*KVP}, v{tt+2}')
    e(f'v_and_b32 v{tt+3}, 31, v{vLANE}')
    e(f'v_lshl_add_u32 v{va}, v{tt+3}, 2, v{tt+2}')
    e(f'v_and_b32 v{tt+3}, 3, v{vLANE}')
    e(f'v_lshl_add_u32 v{vl}, v{tt+3}, 2, v{tt+2}')
    e(f's_mul_i32 s{sT0}, s{sWAVE}, {2*KVH}')
    e(f's_add_u32 s{sT0}, s{sT0}, s{sKV}')
    e(f's_add_u32 s{sT1}, s{sT0}, {KVH}')
    def drow(r): return (r & 3) + 8*(r >> 2)
    for h in range(2):
        so = sT0 if h == 0 else sT1
        for r in range(8):
            e(f'buffer_atomic_add_f32 v{ACC0+32*h+r}, v{va}, {srd(S_WS)}, s{so} offen offset:{drow(r)*KVP}')
    e('s_mov_b32 exec_hi, 0')
    for h in range(2):
        so = sT0 if h == 0 else sT1
        for r in range(8, 11):
            e(f'buffer_atomic_add_f32 v{ACC0+32*h+r}, v{va}, {srd(S_WS)}, s{so} offen offset:{drow(r)*KVP}')
    for h in range(2):
        so = sT0 if h == 0 else sT1
        m = 0xf << (4*h)
        e(f's_mov_b32 exec_lo, {m}\ns_mov_b32 exec_hi, {m}')
        for r in range(8):
            e(f'buffer_atomic_add_f32 v{ACC0+32*h+16+r}, v{vl}, {srd(S_WS)}, s{so} offen offset:{drow(r)*KVP + 128}')
        e('s_mov_b32 exec_hi, 0')
        for r in range(8, 11):
            e(f'buffer_atomic_add_f32 v{ACC0+32*h+16+r}, v{vl}, {srd(S_WS)}, s{so} offen offset:{drow(r)*KVP + 128}')
    e('s_mov_b64 exec, -1')
    atok = e.vm_tok()
    stamp(e, 'atomics issued')

    vW = [7, 11, 12, 13, 15]
    def wo_stage(addr, q):
        items = []
        for i in range(5):
            it = [f's_add_u32 m0, s{sLDSW}, {addr + 1024*i}']
            it.append(f's_add_u32 s{sSOFF}, s{sB2}, {128*q}' if i == 0 else 's_nop 0')
            it.append(f'buffer_load_dwordx4 v{vW[i]}, {srd(S_WO)}, s{sSOFF} offen lds')
            items.append(it)
        return Stage(addr, 20480, items, f'wo q{q}')
    gap = defaultdict(list)
    w = TMP + 16
    ops = [f's_mul_i32 s{sB2}, s{sSG}, {144*1152}', f's_mul_i32 s{sT0}, s{sWAVE}, 40',
           f'v_and_b32 v{w+4}, 7, v{vLANE}', f'v_lshrrev_b32 v{w+5}, 3, v{vLANE}', f'v_and_b32 v{w+5}, 2, v{w+5}',
           f'v_xor_b32 v{w+4}, v{w+4}, v{w+5}', f'v_lshlrev_b32 v{w+4}, 4, v{w+4}',
           f'v_lshrrev_b32 v{w+5}, 3, v{vLANE}', f'v_add_u32 v{w+5}, s{sT0}, v{w+5}']
    for i in range(5):
        ops += [f'v_add_u32 v{w}, {8*i}, v{w+5}', f'v_min_u32 v{w}, 143, v{w}',
                f'v_mul_u32_u24 v{w+1}, {(1 << 16)//9 + 1}, v{w}', f'v_lshrrev_b32 v{w+1}, 16, v{w+1}',
                f'v_mul_u32_u24 v{w+2}, 9, v{w+1}', f'v_sub_u32 v{w}, v{w}, v{w+2}',
                f'v_and_b32 v{w+2}, 7, v{w+1}', f'v_mul_u32_u24 v{w+2}, 18, v{w+2}',
                f'v_lshrrev_b32 v{w+1}, 3, v{w+1}', f'v_mul_u32_u24 v{w+1}, 9, v{w+1}',
                f'v_add3_u32 v{w}, v{w}, v{w+1}, v{w+2}', f'v_mul_u32_u24 v{w}, 1152, v{w}',
                f'v_add_u32 v{vW[i]}, v{w}, v{w+4}']
    spread(gap, ops, 2, 40)
    wslots = [102400, 122880, 0, 20480, 40960, 61440, 81920]
    def add_wo():
        for q in range(9): wst.append(ring.add(wo_stage(wslots[q % 7], q)))
    wst = []
    gap[41].append(add_wo)
    def signal():
        assert e.vm_done >= atok
        e(f's_cmp_lg_u32 s{sWAVE}, 0')
        e('s_cbranch_scc1 L_s1')
        e(f'v_mov_b32 v{w}, 1')
        e(f'v_mov_b32 v{w+1}, 16')
        e(f's_lshl_b32 s{sT0}, s{sSG}, 2')
        e('s_mov_b64 exec, 1')
        e(f'buffer_atomic_add v{w}, v{w+1}, {srd(S_DBG)}, s{sT0} offen');
        e('s_mov_b64 exec, -1')
        e('s_branch L_s2')
        e('L_s1:')
        e(f'buffer_load_dword v{w}, v{vL16}, {srd(S_DBG)}, 0 offen'); e.vm_n -= 1
        e('L_s2:')
    gap[51].append(lambda: e.wait(vm=atok))
    gap[53].append(signal)
    run_stream(e, ring, section(qst, 'v', ACC0), gap, FR)
    stamp(e, 'Q gemm')
    pack_proj()
    stamp(e, 'proj q')
    PQ = X0
    L0 = X0 + 64; L1 = X0 + 68
    KF = X0 + 72
    vKA, vKL, vPOLL, vPZ = 2, 3, 4, 5
    e(f'v_and_b32 v{w}, 3, v{vLANE}')
    e(f'v_bfe_u32 v{w+1}, v{vLANE}, 3, 2')
    e(f'v_lshl_add_u32 v{w}, v{w+1}, 2, v{w}')
    e(f'v_bfe_u32 v{w+1}, v{vLANE}, 2, 1')
    e(f'v_mul_u32_u24 v{w+1}, 9, v{w+1}')
    e(f'v_add_u32 v{w+1}, v{w+1}, v{w}')
    e(f'v_cmp_gt_u32 vcc, 9, v{w}')
    e(f'v_mov_b32 v{w+2}, 18')
    e(f'v_cndmask_b32 v{w+1}, v{w+2}, v{w+1}, vcc')
    e(f'v_mul_u32_u24 v{w+1}, {KVP}, v{w+1}')
    e(f'v_lshrrev_b32 v{w}, 5, v{vLANE}')
    e(f'v_lshl_add_u32 v{vKA}, v{w}, 5, v{w+1}')
    e(f'v_lshl_add_u32 v{vKL}, v{w}, 3, v{w+1}')
    e(f'v_mov_b32 v{vPZ}, 16')
    e(f's_lshl_b32 s{sT2}, s{sSG}, 2')
    def sm_q(a):
        o, p = softmax_ops(a, None, T1, S)
        for i, x in enumerate(o):
            e(x)
            if i % 24 == 23: ring.pump(1)
        def dst(m): return PQ + 16*a + m if m < 16 else (L0 + a if m == 16 else L1 + a)
        for m in range(9): e(f'v_cvt_pk_bf16_f32 v{dst(m)}, v{T1+2*m}, v{T1+2*m+1}')
        for m in range(9): e(f'v_cvt_pk_bf16_f32 v{dst(9+m)}, v{p+2*m}, v{p+2*m+1}')
        for m in (0, 1, 2, 3, 8, 9, 10, 11): e(f'v_permlane32_swap_b32 v{PQ+16*a+m}, v{PQ+16*a+m+4}')
        e(f'v_permlane32_swap_b32 v{L0+a}, v{L1+a}')
    e(f'buffer_load_dword v{vPOLL}, v{vPZ}, {srd(S_DBG)}, s{sT2} offen sc1')
    pt = e.vm_tok()
    sm_q(0)
    e.wait(vm=pt)
    e(f'v_readfirstlane_b32 s{sT3}, v{vPOLL}')
    e(f's_cmp_eq_u32 s{sT3}, 16')
    e('s_cbranch_scc1 L_kok')
    e('L_kspin:')
    e('s_sleep 1')
    e(f'buffer_load_dword v{vPOLL}, v{vPZ}, {srd(S_DBG)}, s{sT2} offen sc1'); e.vm_n -= 1
    e('s_waitcnt vmcnt(0)')
    e(f'v_readfirstlane_b32 s{sT3}, v{vPOLL}')
    e(f's_cmp_eq_u32 s{sT3}, 16')
    e('s_cbranch_scc0 L_kspin')
    e('L_kok:')
    stamp(e, 'kv ready')
    KA = 48
    kt = {}
    def kv_load(h):
        b = KF + 18*(h % 4)
        e(f's_add_u32 s{sT0}, s{sKV}, {h*KVH}')
        for i, off in enumerate((0, 16, 64, 80)):
            e(f'buffer_load_dwordx4 v[{b+4*i}:{b+4*i+3}], v{vKA}, {srd(S_WS)}, s{sT0} offen offset:{off} sc1')
        e(f'buffer_load_dwordx2 v[{b+16}:{b+17}], v{vKL}, {srd(S_WS)}, s{sT0} offen offset:128 sc1')
        kt[h] = e.vm_tok()
    def kv_pack(h):
        b = KF + 18*(h % 4)
        e.wait(vm=kt[h])
        for i in range(9):
            e(f'v_cvt_pk_bf16_f32 v{b+i}, v{b+2*i}, v{b+2*i+1}')
        for i in range(8): e(f'v_accvgpr_write_b32 a{KA+12*h+i}, v{b+i}')
        for i in range(4):
            e(f'v_accvgpr_write_b32 a{KA+12*h+8+i}, {f"v{b+8}" if i == (h % 4) else 0}')
    for h in range(4): kv_load(h)
    sm_q(1)
    for h in range(4): kv_pack(h)
    for h in range(4, 8): kv_load(h)
    sm_q(2)
    for h in range(4, 8): kv_pack(h)
    sm_q(3)
    stamp(e, 'softmax q')
    def OD(h): return ACC0 + 16*h if h < 5 else KF + 16*(h - 5)
    for step in range(3):
        for h in range(8):
            a, up = h % 4, h // 4
            d = f'v[{OD(h)}:{OD(h)+15}]'
            if step < 2: b = PQ + 16*a + 8*step + 4*up
            else: b = L1 if up else L0
            af = KA + 12*h + 4*step
            e(f'v_mfma_f32_32x32x16_bf16 {d}, a[{af}:{af+3}], v[{b}:{b+3}], {0 if step == 0 else d}')
            if step < 2: ring.pump(1)
    G.panel_traddr(e, 9216, regs=[[8, 9, 10], [2, 3, 4]], t=w)
    vTW = [[8, 9, 10], [2, 3, 4]]
    OP_ = PQ
    for h in range(8):
        d = OD(h)
        e(f'v_add_f32 v{d+9}, {f32(1e-6)}, v{d+9}')
    for h in range(8): e(f'v_rcp_f32 v{OD(h)+9}, v{OD(h)+9}')
    for h in range(8):
        d = OD(h)
        for i in range(9): e(f'v_mul_f32 v{d+i}, v{d+i}, v{d+9}')
    def oreg(idx): return OD(idx // 9) + idx % 9
    for i in range(36): e(f'v_cvt_pk_bf16_f32 v{OP_+i}, v{oreg(2*i)}, v{oreg(2*i+1)}')
    stamp(e, 'o done')
    gap = defaultdict(list); mf = []
    def acc4(q): b = ACC0 + 32*(q % 2); return [b, b+16]
    for q in range(9):
        st = wst[q]
        for s in range(9):
            off = ring.stages[st].addr + 1024*s
            for tt_ in range(2):
                a = acc4(q)[tt_]
                mf.append(dict(stage=st, reads=G.tr_reads(vTW[tt_], off, 512), b=f'v[{OP_+4*s}:{OP_+4*s+3}]', acc=f'v[{a}:{a+15}]', first=(s == 0)))
        end = len(mf)
        spread(gap, G.slab_store_ops(acc4(q), q, KF + 16*(q % 2)), end + 1, end + 16)
    run_stream(e, ring, mf, gap, FR)
    stamp(e, 'wo gemm')
    e.wait_all()
```

```python
from collections import defaultdict, deque
from asmlib import *

class Stage:
    def __init__(self, addr, size, items, name=''):
        self.addr = addr; self.size = size
        self.items = items
        self.tok = None
        self.name = name
        self.published = False

class Ring:
    def __init__(self, em):
        self.em = em
        self.stages = []
        self.released = 0
        self.queued = 0
        self.q = deque()
        self.reserved = []
        self.consumed = 0
        self.maxq = None
    def add(self, st):
        self.stages.append(st); return len(self.stages) - 1
    def _free(self, st):
        lo, hi = st.addr, st.addr + st.size
        for j in range(self.released, self.queued):
            o = self.stages[j]
            if lo < o.addr + o.size and o.addr < hi: return False
        for (a, b) in self.reserved:
            if lo < b and a < hi: return False
        return True
    def refill(self, limit=None):
        n = 0
        while self.queued < len(self.stages) and self._free(self.stages[self.queued]) and (limit is None or n < limit):
            st = self.stages[self.queued]
            for k, it in enumerate(st.items):
                self.q.append((self.queued, it, k == len(st.items) - 1))
            self.queued += 1; n += 1
    def pump(self, n=1):
        while n > 0 and self.q:
            s, it, last = self.q.popleft()
            for x in it: self.em(x)
            if last: self.stages[s].tok = self.em.vm_tok()
            n -= 1
    def pump_all(self): self.pump(10**9)
    def barrier(self, publish=None, lg=False):
        if publish is not None:
            while self.stages[publish].tok is None:
                assert self.q, f'stage {publish} {self.stages[publish].name} never queued (released={self.released}, queued={self.queued})'
                self.pump(1)
            self.em.wait(vm=self.stages[publish].tok)
            for j in range(publish + 1): self.stages[j].published = True
        if lg: self.em.wait(lg=self.em.lg_tok())
        self.em('s_barrier')
        self.released = self.consumed
        self.refill()

def spread(gapfill, instrs, start, end):
    costs = [(x[1] if isinstance(x, tuple) else cost(x)) for x in instrs]
    tot = sum(costs); n = max(1, end - start)
    acc = 0
    for x, c in zip(instrs, costs):
        g = start + min(n - 1, int((acc + c / 2) * n / tot))
        gapfill[g].append(x[0] if isinstance(x, tuple) else x)
        acc += c

def run_stream(em, ring, mf, gapfill, frag_base, nfrag=12, group=4, ahead=8, fragk='a', pre=None, tail_fill=True, dma_min_gap=2):
    n = len(mf)
    toks = [None] * n
    last_of_stage = {}
    first_of_stage = {}
    for i, m in enumerate(mf):
        if m.get('stage') is not None:
            last_of_stage[m['stage']] = i
            first_of_stage.setdefault(m['stage'], i)
    bar_at = sorted(first_of_stage.values())
    def frag(i): return frag_base + (i % nfrag) * 4
    def issue_reads(j):
        m = mf[j]
        s = m.get('stage')
        if s is not None and not ring.stages[s].published:
            ring.barrier(publish=s)
        if m.get('reads'):
            f = frag(j)
            for x in m['reads'](fragk, f): em(x)
        toks[j] = em.lg_tok()
    for j in range(min(ahead, n)):
        issue_reads(j)
    if pre:
        for x in pre:
            x() if callable(x) else em(x)
    since = 0
    for i, m in enumerate(mf):
        if i % group == 0:
            em.wait(lg=toks[min(i + group - 1, n - 1)])
        if m.get('prewait'): m['prewait']()
        a = m.get('a') or f'{fragk}[{frag(i)}:{frag(i)+3}]'
        b = m['b']; d = m['acc']
        c = '0' if m.get('first') else d
        if m.get('swap'): a, b = b, a
        em(f'v_mfma_f32_32x32x16_bf16 {d}, {a}, {b}, {c}')
        s = m.get('stage')
        if s is not None and last_of_stage[s] == i:
            ring.consumed = max(ring.consumed, s + 1)
        j = i + ahead
        if j < n: issue_reads(j)
        if ring.q:
            nb = next((x - ahead for x in bar_at if x - ahead > i), n)
            gaps = max(1, nb - i)
            since += 1
            if since >= max(1, min(gaps // len(ring.q), 3)):
                ring.pump(1 if len(ring.q) <= gaps else 2); since = 0
        for x in gapfill.pop(i, []):
            x() if callable(x) else em(x)
    if tail_fill:
        for g in sorted(gapfill):
            for x in gapfill[g]:
                x() if callable(x) else em(x)
        gapfill.clear()
```

```python
import sys, math
sys.path.insert(0, 'gen')
from asmlib import *
from engine import *
from collections import defaultdict

NAME = 'recurrent_scan__linear_kernel_hedgehog__dense_activation_silu__prompt'
LOG2E = 1.4426950408889634
LN2 = 0.6931471805599453
import struct
def f32(x): return '0x%08x' % struct.unpack('<I', struct.pack('<f', x))[0]

SLAB_BYTES = 2048 * 576 * 2
WS_SLAB = 0
WS_KV = 16 * SLAB_BYTES
KV_BYTES = 32 * 20 * 256
WS_DBG = WS_KV + KV_BYTES
WS_SIZE = 268435456

S_X, S_W1, S_W2, S_WS, S_WQKV, S_WPHI, S_WO, S_DBG = 8, 12, 16, 20, 24, 28, 32, 36
sWAVE, sTILE, sROLE, sSG = 40, 41, 42, 43
sXOFF = 44
sONES, sMASK = 45, 46
sLDSW = 47
sB1, sB2 = 48, 49
sT0, sT1, sT2, sT3 = 50, 51, 52, 53
sSOFF = 54
sSLAB = 55
sST = 56
sPF2 = 57
def srd(b): return f's[{b}:{b+3}]'

vLANE = 1
vD = [2, 3, 4]
vE = [5, 6, 7]
vTR = [[8, 9, 10], [11, 12, 13]]
vL16 = 14
vXO = 15
X0 = 16
ACC0 = 160
TMP = 224
def X(ks): return f'v[{X0+4*ks}:{X0+4*ks+3}]'

def bf16_round(e, dst, src):
    e(f'v_cvt_pk_bf16_f32 v{dst}, v{src}, v{src}')
    e(f'v_and_b32 v{dst}, s{sMASK}, v{dst}')

STAMPS = False
PF2 = True
STORE_FLAGS = 'sc1'
_stamp_n = [0]
def stamp(e, name=''):
    if not STAMPS: return
    i = _stamp_n[0]; _stamp_n[0] += 1
    assert i < 32
    e('s_memtime s[58:59]')
    e('s_memrealtime s[60:61]')
    e('s_waitcnt lgkmcnt(0)'); e.lg_done = e.lg_n
    e(f'v_accvgpr_read_b32 v0, a255')
    e(f'v_writelane_b32 v0, s58, {2*i}')
    e(f'v_writelane_b32 v0, s60, {2*i+1}')
    e('v_accvgpr_write_b32 a255, v0')
    e(f'v_accvgpr_read_b32 v0, a254')
def stamp_flush(e):
    if not STAMPS: return
    stamp(e, 'end')
    e(f's_lshl_b32 s58, s2, 2\ns_add_u32 s58, s58, s{sWAVE}\ns_lshl_b32 s58, s58, 8\ns_add_u32 s58, s58, {WS_DBG}')
    e(f'v_lshlrev_b32 v0, 2, v{vLANE}')
    e(f'buffer_store_dword a255, v0, {srd(S_WS)}, s58 offen')

def prologue(e):
    e('s_cmp_ge_u32 s2, 256\ns_cbranch_scc0 L_k1_go\ns_endpgm\nL_k1_go:')
    if STAMPS:
        e('v_accvgpr_write_b32 a254, v0\nv_accvgpr_write_b32 a255, 0')
        stamp(e, 'start')
    e('s_load_dwordx16 s[64:79], s[0:1], 0')
    e('s_load_dwordx4 s[80:83], s[0:1], 64')
    e(f'v_lshrrev_b32 v{TMP}, 6, v0')
    e(f'v_and_b32 v{vLANE}, 63, v0')
    e(f'v_readfirstlane_b32 s{sWAVE}, v{TMP}')
    e(f's_and_b32 s{sT0}, s2, 7')
    e(f's_lshr_b32 s{sT1}, s2, 3')
    e(f's_lshr_b32 s{sSG}, s{sT0}, 1')
    e(f's_and_b32 s{sT0}, s{sT0}, 1')
    e(f's_lshl_b32 s{sT0}, s{sT0}, 3')
    e(f's_and_b32 s{sT2}, s{sT1}, 7')
    e(f's_add_u32 s{sTILE}, s{sT0}, s{sT2}')
    e(f's_lshr_b32 s{sROLE}, s{sT1}, 3')
    e(f's_lshl_b32 s{sT0}, s{sTILE}, 2')
    e(f's_add_u32 s{sT0}, s{sT0}, s{sWAVE}')
    e(f's_mul_i32 s{sXOFF}, s{sT0}, {32*1152}')
    e(f's_mov_b32 s{sONES}, 0x3f803f80')
    e(f's_mov_b32 s{sMASK}, 0xffff0000')
    e(f'v_lshlrev_b32 v{vL16}, 4, v{vLANE}')
    vA, vC0, vC1 = TMP+24, TMP+25, TMP+26
    t = TMP
    e(f'v_lshrrev_b32 v{t}, 5, v{vLANE}')
    e(f'v_and_b32 v{t+1}, 31, v{vLANE}')
    e(f'v_xor_b32 v{t+1}, v{t+1}, v{t}')
    e(f'v_mul_u32_u24 v{t}, 1152, v{t}')
    e(f'v_lshl_add_u32 v{vA}, v{t+1}, 4, v{t}')
    e(f'v_lshrrev_b32 v{t}, 3, v{vLANE}')
    e(f'v_mul_u32_u24 v{t}, 1152, v{t}')
    e(f'v_add_u32 v{t}, 1024, v{t}')
    e(f'v_and_b32 v{t+1}, 7, v{vLANE}')
    e(f'v_lshrrev_b32 v{t+2}, 4, v{vLANE}')
    e(f'v_xor_b32 v{t+1}, v{t+1}, v{t+2}')
    e(f'v_lshl_add_u32 v{vC0}, v{t+1}, 4, v{t}')
    e(f'v_xor_b32 v{vC1}, 64, v{vC0}')
    e(f's_mul_i32 s{sLDSW}, s{sWAVE}, 16896')
    e(f's_lshl_b32 s{sT3}, s{sWAVE}, 12')
    e(f'v_lshlrev_b32 v{t+4}, 7, v0')
    e(f's_mul_i32 s{sT1}, s{sTILE}, {128*1152}')
    e(f's_mul_i32 s{sT2}, s{sROLE}, {288*128}')
    e(f's_add_u32 s{sT1}, s{sT1}, s{sT2}')
    e('s_waitcnt lgkmcnt(0)')
    def mksrd(b, p, nbytes): e(f's_mov_b32 s{b}, s{p}\ns_mov_b32 s{b+1}, s{p+1}\ns_mov_b32 s{b+2}, {nbytes}\ns_mov_b32 s{b+3}, 0x20000')
    stamp(e, 'kernarg')
    mksrd(S_X, 64, 2048*576*2)
    if XTOUCH: e(f'buffer_load_dword v{t+5}, v{t+4}, {srd(S_X)}, s{sT1} offen offset:2048')
    pieces = []
    for part in range(2):
        for j in range(16):
            imm = 2304*(j & 1) + 512*part
            it = [f's_add_u32 m0, s{sLDSW}, {XA + part*67584 + 1056*j - imm}']
            it.append(f's_add_u32 s{sSOFF}, s{sXOFF}, {4608*(j >> 1)}' if j % 2 == 0 else 's_nop 0')
            it.append(f'buffer_load_dwordx4 v{vA}, {srd(S_X)}, s{sSOFF} offen offset:{imm} lds')
            pieces.append(it)
    for i in range(4):
        pieces.append([f's_add_u32 m0, s{sT3}, {XC + 1024*i}', f's_add_u32 s{sSOFF}, s{sXOFF}, {9216*i}',
                       f'buffer_load_dwordx4 v{[vC0, vC1][i & 1]}, {srd(S_X)}, s{sSOFF} offen lds'])
    for it in pieces[:16]:
        for x in it: e(x)
    tokA = e.vm_tok()
    for (b, p, nbytes) in [(S_WQKV, 66, 576*1728*2), (S_WPHI, 68, 32*18*18*2), (S_WO, 70, 576*576*2),
                           (S_W1, 74, 576*4608*2), (S_W2, 76, 576*4608*2), (S_DBG, 80, 256), (S_WS, 82, WS_SIZE)]:
        mksrd(b, p, nbytes)
    be, bo, bc = XAD, XAD+1, XAD+2
    e(f'v_bfe_u32 v{t}, v{vLANE}, 1, 4')
    e(f'v_mul_u32_u24 v{t+1}, 1056, v{t}')
    e(f'v_and_b32 v{t+2}, 1, v{vLANE}')
    e(f'v_lshl_add_u32 v{t+1}, v{t+2}, 9, v{t+1}')
    e(f'v_lshrrev_b32 v{t+3}, 5, v{vLANE}')
    e(f'v_lshl_add_u32 v{t+1}, v{t+3}, 6, v{t+1}')
    e(f'v_add_u32 v{t+1}, s{sLDSW}, v{t+1}')
    e(f'v_lshlrev_b32 v{t+2}, 4, v{t+2}')
    e(f'v_add_u32 v{be}, v{t+1}, v{t+2}')
    e(f'v_sub_u32 v{bo}, v{t+1}, v{t+2}')
    e(f'v_add_u32 v{be+6}, 67584, v{be}')
    e(f'v_add_u32 v{bo+6}, 67584, v{bo}')
    e(f'v_and_b32 v{t}, 7, v{t}')
    e(f'v_lshlrev_b32 v{t+3}, 2, v{t+3}')
    e(f'v_xor_b32 v{t}, v{t}, v{t+3}')
    e(f'v_and_b32 v{t+1}, 31, v{vLANE}')
    e(f'v_lshlrev_b32 v{t+1}, 7, v{t+1}')
    e(f'v_lshl_add_u32 v{t+1}, v{t}, 4, v{t+1}')
    e(f'v_add_u32 v{t+1}, {XC}, v{t+1}')
    e(f'v_add_u32 v{bc}, s{sT3}, v{t+1}')
    for v in range(1, 4): e(f'v_xor_b32 v{bc+v}, {16*v}, v{bc}')
    for it in pieces[16:24]:
        for x in it: e(x)
    s1 = [LNS, LNS+1]; s2 = [LNS+2, LNS+3]
    for r in s1 + s2: e(f'v_mov_b32 v{r}, 0')
    lt = {}
    def rd(ks):
        p, v = divmod(ks, 4)
        if p < 8:
            e(f'ds_read_b128 {X(ks)}, v{(bo if v & 1 else be) + 6*(p >> 2)} offset:{XA + 128*(p & 3) + 16*v}')
        else:
            e(f'ds_read_b128 {X(ks)}, v{bc+v}')
        lt[ks] = e.lg_tok()
    def p1(ks):
        e.wait(lg=lt[ks])
        for i in range(4):
            r = X0 + 4*ks + i
            e(f'v_dot2c_f32_bf16 v{s1[i%2]}, s{sONES}, v{r}')
            e(f'v_dot2c_f32_bf16 v{s2[i%2]}, v{r}, v{r}')
    e.wait(vm=tokA)
    stamp(e, 'xA landed')
    for ks in range(16): rd(ks)
    for ks in range(16):
        if ks < 12:
            for x in pieces[24 + ks]: e(x)
        p1(ks)
    tokB = e.vm_tok()
    return dict(tokB=tokB, rd=rd, p1=p1)

XA = 6144
XC = XA + 2*67584
XEND = XC + 16384
XAD = ACC0
LNS = ACC0 + 8
LNC = TMP + 28
XTOUCH = True

def ln_finish(e, xs, ring):
    e.wait(vm=xs['tokB'])
    stamp(e, 'x all landed')
    for ks in range(16, 36): xs['rd'](ks)
    for ks in range(16, 36):
        ring.pump(1)
        xs['p1'](ks)
    stamp(e, 'pass1')
    s1 = [LNS, LNS+1]; s2 = [LNS+2, LNS+3]
    a, b, c, d = LNS+4, LNS+5, LNS+6, LNS+7
    e(f'v_add_f32 v{a}, v{s1[0]}, v{s1[1]}')
    e(f'v_add_f32 v{c}, v{s2[0]}, v{s2[1]}')
    e(f'v_mov_b32 v{b}, v{a}')
    e(f'v_mov_b32 v{d}, v{c}')
    ring.pump(1)
    e(f'v_permlane32_swap_b32 v{a}, v{b}')
    e(f'v_permlane32_swap_b32 v{c}, v{d}')
    e(f'v_add_f32 v{a}, v{a}, v{b}')
    e(f'v_add_f32 v{c}, v{c}, v{d}')
    e(f'v_mul_f32 v{a}, {f32(1.0/576)}, v{a}')
    e(f'v_mul_f32 v{c}, {f32(1.0/576)}, v{c}')
    e(f'v_fma_f32 v{c}, -v{a}, v{a}, v{c}')
    e(f'v_max_f32 v{c}, 0, v{c}')
    bf16_round(e, b, a)
    bf16_round(e, c, c)
    e(f'v_add_f32 v{c}, {f32(1e-5)}, v{c}')
    bf16_round(e, c, c)
    ring.pump(1)
    e(f'v_sqrt_f32 v{c}, v{c}')
    bf16_round(e, c, c)
    e(f'v_rcp_f32 v{c}, v{c}')
    ring.pump(1)
    e(f'v_mul_f32 v{LNC}, {f32(LOG2E)}, v{c}')
    e(f'v_mul_f32 v{LNC+2}, -v{b}, v{LNC}')

def norm_ops(ks, T):
    C, NB = LNC, LNC + 2
    ops = []
    for i in range(4):
        r = X0 + 4*ks + i
        ops.append(f'v_lshlrev_b32 v{T+2*i}, 16, v{r}')
        ops.append(f'v_and_b32 v{T+2*i+1}, s{sMASK}, v{r}')
    for i in range(4):
        ops.append(f'v_pk_fma_f32 v[{T+2*i}:{T+2*i+1}], v[{T+2*i}:{T+2*i+1}], v[{C}:{C+1}], v[{NB}:{NB+1}] op_sel_hi:[1,0,0]')
    for i in range(4):
        ops.append(f'v_cvt_pk_bf16_f32 v{X0+4*ks+i}, v{T+2*i}, v{T+2*i+1}')
    return ops

def add_norm(e, gap, per_ks, T, lead=2):
    pre = []
    for ks in range(lead): pre += norm_ops(ks, T)
    for ks in range(lead, 36):
        spread(gap, norm_ops(ks, T), (ks - lead) * per_ks, (ks - lead + 1) * per_ks)
    return pre

def panel_voffsets(e, regs, ldw):
    t = TMP + 20
    e(f'v_lshrrev_b32 v{t}, 3, v{vLANE}')
    e(f'v_mul_u32_u24 v{t}, {ldw}, v{t}')
    e(f'v_and_b32 v{t+1}, 7, v{vLANE}')
    e(f'v_lshrrev_b32 v{t+2}, 3, v{vLANE}')
    e(f'v_and_b32 v{t+2}, 2, v{t+2}')
    e(f'v_xor_b32 v{t+1}, v{t+1}, v{t+2}')
    e(f'v_lshl_add_u32 v{regs[0]}, v{t+1}, 4, v{t}')
    for i in range(1, len(regs)):
        e(f'v_add_u32 v{regs[i]}, {8*ldw-1024}, v{regs[i-1]}')

def panel_traddr(e, half_stride, regs=None, t=None):
    if t is None: t = TMP + 20
    vTR = regs or globals()['vTR']
    a = vTR[0][0]
    e(f'v_lshrrev_b32 v{t}, 5, v{vLANE}')
    e(f'v_mul_u32_u24 v{a}, {half_stride}, v{t}')
    e(f'v_bfe_u32 v{t}, v{vLANE}, 2, 2')
    e(f'v_lshl_add_u32 v{a}, v{t}, 7, v{a}')
    e(f'v_lshrrev_b32 v{t}, 1, v{t}')
    e(f'v_lshl_add_u32 v{a}, v{t}, 5, v{a}')
    e(f'v_and_b32 v{t}, 1, v{vLANE}')
    e(f'v_lshl_add_u32 v{a}, v{t}, 6, v{a}')
    e(f'v_bfe_u32 v{t}, v{vLANE}, 4, 1')
    e(f'v_lshl_add_u32 v{a}, v{t}, 4, v{a}')
    e(f'v_bfe_u32 v{t}, v{vLANE}, 1, 1')
    e(f'v_lshl_add_u32 v{a}, v{t}, 3, v{a}')
    e(f'v_xor_b32 v{vTR[1][0]}, 32, v{a}')
    for tt in range(2):
        for w in (1, 2):
            e(f'v_add_u32 v{vTR[tt][w]}, {65536*w}, v{vTR[tt][0]}')

def tr_reads(regs, off, second):
    def fn(k, f):
        out = []
        for i, o in enumerate((off, off + second)):
            w, oo = divmod(o, 65536)
            out.append(f'ds_read_b64_tr_b16 {k}[{f+2*i}:{f+2*i+1}], v{regs[w]} offset:{oo}')
        return out
    return fn

def silu_ops(acc, hdst):
    ops = []
    T = TMP
    for g in range(4):
        t = T + 4 * (g % 2)
        for i in range(4): ops.append(f'v_exp_f32 v{t+i}, -v{acc+4*g+i}')
        for i in range(4): ops.append(f'v_add_f32 v{t+i}, 1.0, v{t+i}')
        for i in range(4): ops.append(f'v_rcp_f32 v{t+i}, v{t+i}')
        for i in range(4): ops.append(f'v_mul_f32 v{t+i}, v{acc+4*g+i}, v{t+i}')
        for i in range(2): ops.append(f'v_cvt_pk_bf16_f32 v{T+8+2*(g%2)+i}, v{t+2*i}, v{t+2*i+1}')
        for i in range(2): ops.append(f'v_accvgpr_write_b32 a{hdst+2*g+i}, v{T+8+2*(g%2)+i}')
    return ops

def slab_store_ops(accs, q, tbase):
    ops = [f's_add_u32 s{sST}, s{sSLAB}, {q*4096}']
    for part in range(4):
        t, u = divmod(part, 2)
        a = accs[t] + 8*u
        T = tbase + 4 * part
        for i in range(4): ops.append(f'v_cvt_pk_bf16_f32 v{T+i}, v{a+2*i}, v{a+2*i+1}')
        ops.append(f'buffer_store_dwordx4 v[{T}:{T+3}], v{vL16}, {srd(S_WS)}, s{sST} offen offset:{part*1024} {STORE_FLAGS}')
    return ops

def ffn_setup(e):
    panel_voffsets(e, vD, 9216)
    panel_voffsets(e, vE, 1152)
    panel_traddr(e, 4096)
    e(f's_mul_i32 s{sT0}, s{sSG}, 3')
    e(f's_add_u32 s{sT0}, s{sT0}, s{sROLE}')
    e(f's_mul_i32 s{sB1}, s{sT0}, 768')
    e(f's_mul_i32 s{sT1}, s{sWAVE}, {48*9216}')
    e(f's_add_u32 s{sB1}, s{sB1}, s{sT1}')
    e(f's_mul_i32 s{sB2}, s{sT0}, {384*1152}')
    e(f's_mul_i32 s{sT1}, s{sWAVE}, {48*1152}')
    e(f's_add_u32 s{sB2}, s{sB2}, s{sT1}')
    e(f's_mul_i32 s{sSLAB}, s{sT0}, {SLAB_BYTES}')
    e(f's_add_u32 s{sSLAB}, s{sSLAB}, s{sXOFF}')
    t = TMP + 20
    e(f'v_mul_u32_u24 v{t}, {(1 << 16)//6 + 1}, v0')
    e(f'v_lshrrev_b32 v{t}, 16, v{t}')
    e(f'v_mul_u32_u24 v{t+1}, 6, v{t}')
    e(f'v_sub_u32 v{t+1}, v0, v{t+1}')
    e(f'v_min_u32 v{t}, 35, v{t}')
    e(f'v_mul_u32_u24 v{t}, 9216, v{t}')
    e(f'v_lshl_add_u32 v{t}, v{t+1}, 7, v{t}')
    e(f's_and_b32 s{sT1}, s{sTILE}, 7')
    e(f's_mul_i32 s{sT2}, s{sT1}, {72*9216}')
    e(f's_mul_i32 s{sT3}, s{sT0}, 768')
    e(f's_add_u32 s{sT2}, s{sT2}, s{sT3}')
    e(f'buffer_load_dword v{t+2}, v{t}, {srd(S_W1)}, s{sT2} offen')
    e(f's_add_u32 s{sT2}, s{sT2}, {36*9216}')
    e(f'buffer_load_dword v{t+3}, v{t}, {srd(S_W1)}, s{sT2} offen')
    e(f's_mul_i32 s{sPF2}, s{sT0}, {384*1152}')
    e(f's_mul_i32 s{sT2}, s{sT1}, {48*1152}')
    e(f's_add_u32 s{sPF2}, s{sPF2}, s{sT2}')
    e(f'v_min_u32 v{vXO}, 215, v0')
    e(f'v_lshlrev_b32 v{vXO}, 7, v{vXO}')
    ring = Ring(e)
    NS = 6
    def mk(idx, base, goff, ldw, regs, S, name):
        addr = (idx % NS) * 24576
        items = []
        for half in range(2):
            for i in range(3):
                it = []
                if i == 0:
                    it = [f's_add_u32 m0, s{sLDSW}, {addr + half*3072}', f's_add_u32 s{sSOFF}, s{base}, {goff + half*24*ldw}']
                    items.append(it); it = []
                items.append([f'buffer_load_dwordx4 v{regs[i]}, {srd(S)}, s{sSOFF} offen offset:{i*1024} lds'])
        return Stage(addr, 24576, items, name)
    g1 = {}; g2 = {}
    for p in range(6):
        for k in range(3):
            g1[p, k] = ring.add(mk(len(ring.stages), sB1, k*192*9216 + p*128, 9216, vD, S_W1, f'w1 p{p} k{k}'))
    order2 = [(0, 0), (1, 0), (0, 1), (1, 1)] + [(q, k) for q in range(2, 9) for k in range(2)]
    for (q, k) in order2:
        g2[q, k] = ring.add(mk(len(ring.stages), sB2, k*192*1152 + q*128, 1152, vE, S_W2, f'w2 q{q} k{k}'))
    return ring, g1, g2, order2

def ffn_main(e, ring, g1, g2, order2):
    mf = []; gap = defaultdict(list)
    H0 = 0; FR = 96
    for p in range(6):
        accs = [ACC0 + 32*(p % 2), ACC0 + 32*(p % 2) + 16]
        for ks in range(36):
            kb, v = divmod(ks, 4)
            st = g1[p, kb // 3]
            off = ring.stages[st].addr + (kb % 3)*8192 + v*1024
            for t in range(2):
                mf.append(dict(stage=st, reads=tr_reads(vTR[t], off, 512), b=X(ks), acc=f'v[{accs[t]}:{accs[t]+15}]', first=(ks == 0)))
        end = len(mf)
        ops = silu_ops(accs[0], H0 + 16*p) + silu_ops(accs[1], H0 + 16*p + 8)
        spread(gap, ops, end + 1, end + (70 if p < 5 else 62))
        if p == 0 and PF2:
            gap[10].append(f'buffer_load_dword v{TMP+26}, v{vXO}, {srd(S_W2)}, s{sPF2} offen')
            gap[12].append(f's_add_u32 s{sPF2}, s{sPF2}, {216*128}')
            gap[13].append(f'buffer_load_dword v{TMP+27}, v{vXO}, {srd(S_W2)}, s{sPF2} offen')
        if p in (0, 5): gap[end - 1].append(lambda: stamp(e, 'gemm1 panel'))
    def acc2(q): b = X0 + 32*(q % 3); return [b, b+16]
    for (q, k) in order2:
        st = g2[q, k]
        for kk in range(12):
            kb, v = divmod(kk, 4)
            pblk = 3*k + kb
            off = ring.stages[st].addr + kb*8192 + v*1024
            hb = H0 + 16*pblk + 4*v
            for t in range(2):
                a = acc2(q)[t]
                mf.append(dict(stage=st, reads=tr_reads(vTR[t], off, 512), b=f'a[{hb}:{hb+3}]', acc=f'v[{a}:{a+15}]', first=(k == 0 and kk == 0)))
        if k == 1:
            end = len(mf)
            spread(gap, slab_store_ops(acc2(q), q, X0 + 96 + 16*(q % 2)), end + 1, end + 22)
    pre = add_norm(e, gap, 2, TMP + 12)
    run_stream(e, ring, mf, gap, FR, pre=pre)

def k2(e):
    e('s_cmp_ge_u32 s2, 576\ns_cbranch_scc0 L_k2_go\ns_endpgm\nL_k2_go:')
    e('s_load_dwordx2 s[4:5], s[0:1], 0')
    e('s_load_dwordx2 s[6:7], s[0:1], 56')
    e('s_load_dwordx2 s[20:21], s[0:1], 72')
    e(f's_mul_i32 s3, s2, {(1<<16)//9+1}')
    e('s_lshr_b32 s3, s3, 16')
    e('s_mul_i32 s24, s3, 9')
    e('s_sub_u32 s24, s2, s24')
    e('v_lshlrev_b32 v1, 4, v0')
    e('s_lshl_b32 s25, s2, 12')
    e('v_and_b32 v2, 31, v0')
    e('v_mul_u32_u24 v2, 1152, v2')
    e('v_bfe_u32 v3, v0, 5, 1')
    e('v_lshl_add_u32 v2, v3, 6, v2')
    e('v_lshrrev_b32 v3, 6, v0')
    e('v_lshl_add_u32 v2, v3, 4, v2')
    e('s_mul_i32 s26, s3, 36864')
    e('s_lshl_b32 s27, s24, 7')
    e('s_add_u32 s26, s26, s27')
    e('s_mov_b32 s28, 0xffff0000')
    e('s_waitcnt lgkmcnt(0)')
    e(f's_mov_b32 s8, s4\ns_mov_b32 s9, s5\ns_mov_b32 s10, {SLAB_BYTES}\ns_mov_b32 s11, 0x20000')
    e(f's_mov_b32 s12, s6\ns_mov_b32 s13, s7\ns_mov_b32 s14, {SLAB_BYTES}\ns_mov_b32 s15, 0x20000')
    e(f's_mov_b32 s16, s20\ns_mov_b32 s17, s21\ns_mov_b32 s18, {WS_SIZE}\ns_mov_b32 s19, 0x20000')
    toks = []
    for s in range(16):
        e(f'buffer_load_dwordx4 v[{8+4*s}:{11+4*s}], v1, s[16:19], s25 offen')
        toks.append(e.vm_tok())
        if s < 15: e(f's_add_u32 s25, s25, {SLAB_BYTES}')
    e('buffer_load_dwordx4 v[4:7], v2, s[8:11], s26 offen')
    xt = e.vm_tok()
    Y = 72; S = 80; T = 88
    for s in range(16):
        acc = Y if s < 12 else S
        first = s in (0, 12)
        e.wait(vm=toks[s])
        for i in range(4):
            r = 8 + 4*s + i
            d = acc + 2*i if first else T + 2*i
            e(f'v_lshlrev_b32 v{d}, 16, v{r}')
            e(f'v_and_b32 v{d+1}, s28, v{r}')
        if not first:
            for i in range(4):
                e(f'v_pk_add_f32 v[{acc+2*i}:{acc+2*i+1}], v[{acc+2*i}:{acc+2*i+1}], v[{T+2*i}:{T+2*i+1}]')
    for i in range(8): e(f'v_exp_f32 v{T+i}, -v{Y+i}')
    for i in range(8): e(f'v_mul_f32 v{S+i}, v{S+i}, v{Y+i}')
    for i in range(8): e(f'v_add_f32 v{T+i}, 1.0, v{T+i}')
    for i in range(8): e(f'v_rcp_f32 v{T+i}, v{T+i}')
    for i in range(8): e(f'v_mul_f32 v{S+i}, {f32(LN2*LN2)}, v{S+i}')
    e.wait(vm=xt)
    for i in range(4):
        e(f'v_lshlrev_b32 v{Y+2*i}, 16, v{4+i}')
        e(f'v_and_b32 v{Y+2*i+1}, s28, v{4+i}')
    for i in range(8): e(f'v_fmac_f32 v{Y+i}, v{S+i}, v{T+i}')
    for i in range(4): e(f'v_cvt_pk_bf16_f32 v{4+i}, v{Y+2*i}, v{Y+2*i+1}')
    e('buffer_store_dwordx4 v[4:7], v2, s[12:15], s26 offen')
    e('s_endpgm')

def kd(name, vgpr, accum, sgpr=100):
    return f'''.p2align 6
.amdhsa_kernel {name}
  .amdhsa_next_free_vgpr {vgpr}
  .amdhsa_next_free_sgpr {sgpr}
  .amdhsa_accum_offset {accum}
  .amdhsa_group_segment_fixed_size 0
  .amdhsa_kernarg_size 80
  .amdhsa_user_sgpr_count 2
  .amdhsa_user_sgpr_kernarg_segment_ptr 1
  .amdhsa_system_sgpr_workgroup_id_x 1
.end_amdhsa_kernel
'''

def build(path, verbose=False):
    import attn
    e = Em()
    xt = prologue(e)
    e(f's_cmp_eq_u32 s{sROLE}, 3')
    e('s_cbranch_scc1 L_attn')
    vm0 = (e.vm_n, e.lg_n, e.vm_done, e.lg_done)
    sn = _stamp_n[0]
    ring, g1, g2, order2 = ffn_setup(e)
    e(f's_mul_i32 s{sLDSW}, s{sWAVE}, 6144')
    ring.reserved = [(XA + 67584, XEND)]
    ring.barrier()
    stamp(e, 'barrier1')
    ln_finish(e, xt, ring)
    ring.reserved = []
    stamp(e, 'stats done')
    ffn_main(e, ring, g1, g2, order2)
    stamp(e, 'mfma done')
    e.wait_all()
    stamp(e, 'stores done')
    stamp_flush(e)
    e('s_endpgm')
    _stamp_n[0] = sn
    e('L_attn:')
    e.vm_n, e.lg_n, e.vm_done, e.lg_done = vm0
    e('s_nop 7')
    attn.attn_path(e, xt, sys.modules[__name__])
    stamp_flush(e)
    e('s_endpgm')
    n1 = e.fix_hazards(verbose)
    e2 = Em(); k2(e2); n2 = e2.fix_hazards(verbose)
    hdr = open(f'cdna_kernels/{NAME}.s.ref').read().split('\n')
    hdr = [l for l in hdr if l.startswith(';') and '@launch' not in l and 'Override' not in l and 'grid=ceil' not in l]
    out = '\n'.join(hdr) + '\n'
    out += f'; @launch kernel=k1_kernel grid=(256,1,1) block=(256,1,1) lds=163840\n'
    out += f'; @launch kernel=k2_kernel grid=(576,1,1) block=(256,1,1) lds=0\n'
    out += '.amdgcn_target "amdgcn-amd-amdhsa--gfx950"\n.text\n'
    for nm, em in (('k1_kernel', e), ('k2_kernel', e2)):
        out += f'.globl {nm}\n.p2align 8\n.type {nm},@function\n{nm}:\n' + em.text()
    out += '.section .rodata,"a"\n' + kd('k1_kernel', 512, 256) + kd('k2_kernel', 96, 96, 32)
    open(path, 'w').write(out)
    print(f'wrote {path}: {len(e.ins)} + {len(e2.ins)} instrs, hazard pads {n1} {n2}')

if __name__ == '__main__':
    STAMPS = '-s' in sys.argv
    for a in sys.argv:
        if a.startswith('-f='): STORE_FLAGS = a[3:]
    build(sys.argv[1] if len(sys.argv) > 1 else f'cdna_kernels/{NAME}.s', verbose='-v' in sys.argv)
```

```python
from common import *
from common import _stamp_n, _lbl

PHI = 81920; PHP = 592
VB = 0; VP = 400
MIMG = 126976
FL = 143360
def _kvoff(i):
    def f(l):
        L = 64*i + l; row, cc = divmod(L, 36)
        sc = 2*(cc >> 2) + (cc & 1)
        return row*3456 + 1152*(1 + (sc >= 9)) + 144*((cc >> 1) & 1) + 16*(sc % 9) - 1024*(i % 4)
    return f
def _qoff(i):
    def f(l):
        L = 64*i + l; row, cc = divmod(L, 20)
        sc = min(2*(cc >> 2) + (cc & 1), 8)
        return row*3456 + 144*((cc >> 1) & 1) + 16*sc - (1024*i if i < 4 else 0)
    return f
def _wdst(i):
    def f(w, l):
        idx = 64*w + l + 256*i
        if idx > 1295: return MIMG + 34560 + 4*l
        R = idx // 9
        return MIMG + 4*idx + 124*R + 36*((R // 18) & 3)
    return f
_tk = lane_fn(32*576, 576, 32, 16, 8)
TAB.lane[1] = [
    [_kvoff(0), _kvoff(1), _kvoff(2), _kvoff(3)], [_kvoff(4), _kvoff(5), _kvoff(6), _kvoff(7)],
    [_kvoff(8), _tk, lambda l: _tk(l) + 65536, lambda l: _tk(l) + 131072],
    [_qoff(0), _qoff(1), _qoff(2), _qoff(3)],
    [_qoff(4), lane_fn(32*320, 320, 32, 16, 8),
     lambda l: MIMG + lane_fn(0, 160, 0, 16, 8)(l) + (11520*(l >> 5) if (l & 1) == (l >> 5) else 23040),
     lambda l: PHI + (l & 31)*PHP + 288*(l >> 5)],
    [lane_fn(2*PHP, 4*PHP, 16, 32, 8, K=PHI), lane_fn(2*PHP, 4*PHP, 0, 0, 72, K=PHI + 64),
     lambda l: VB + lane_fn(2*VP, 4*VP, 0, 0, 0)(l) + 8*min(4*((l >> 4) & 1) + (l & 3), 5),
     lambda l: FL + 16384 + 8*l + 4*(l >> 5)],
    [lambda l: FL + 16*l, lambda l: 4*l, lambda l: 0, lambda l: 0],
    [lambda l: VB + (l & 31)*VP + 192*(l >> 5), lambda l: (min(l, 53) // 3)*3456 + (0, 140, 284)[min(l, 53) % 3], lambda l: 0, lambda l: 0],
]
TAB.thr[1] = [[_wdst(0), _wdst(1), _wdst(2), _wdst(3)], [_wdst(4), _wdst(5), lambda w, l: MIMG + 1024*w + 16*l, lambda w, l: MIMG + min(1024*w + 16*l, 111*16)]]

def attn_path(e, xs):
    sMYF = sA1
    sP1 = sA0
    vQ = [2, 3, 4, 5, 6]
    vK = list(range(2, 11))
    vT = [11, 12, 13]
    FR = 0; WPH = 48; KP = 132; VA = 168
    e(f's_mul_i32 s{sB1}, s{sWAVE}, {16*3456}')
    e(f's_mul_i32 s{sT0}, s{sSG}, 288')
    e(f's_add_u32 s{sB1}, s{sB1}, s{sT0}')
    e(f's_mul_i32 s{sLDSW}, s{sWAVE}, 9216')
    sLQ = 73
    e(f's_mul_i32 s{sT0}, s{sROT}, {64*3456}')
    for k in range(9):
        e(f's_add_u32 s{sQ+k}, s{sB1}, s{sT0}')
        if k < 8:
            e(f's_add_u32 s{sT0}, s{sT0}, {64*3456}')
            e(f's_cmp_ge_u32 s{sT0}, {576*3456}')
            e(f's_cselect_b32 s{sT0}, 0, s{sT0}')
    ring = Ring(e)
    def kv_stage(addr, kb):
        items = []
        for i in range(9):
            it = []
            if i % 4 == 0:
                it.append(f's_add_u32 m0, s{sLDSW}, {addr + 1024*i}')
                it.append('s_nop 0')
            it.append(f'buffer_load_dwordx4 v{vK[i]}, {srd(S_WQKV)}, s{sQ+kb} offen offset:{1024*(i % 4)} lds')
            items.append(it)
        return Stage(addr, 36864, items, f'kv kb{kb}')
    def q_stage(addr, kb):
        items = []
        for i in range(5):
            it = []
            if i % 4 == 0:
                it.append(f's_add_u32 m0, s{sLQ}, {addr + 1024*i}')
                it.append('s_nop 0')
            it.append(f'buffer_load_dwordx4 v{vQ[i]}, {srd(S_WQKV)}, s{sQ+kb} offen offset:{1024*(i % 4)} lds')
            items.append(it)
        return Stage(addr, 20480, items, f'q kb{kb}')
    kslot = [0, 1, 2, 0, 1, 3, 2, 0, 1] if C.kslot else [0, 1, 2, 0, 1, 2, 3, 0, 1]
    kst = [ring.add(kv_stage(kslot[kb] * 36864, kb)) for kb in range(9)]
    qslots = [61440, 81920, 102400, 122880, 0, 20480, 40960]
    qst = []
    ring.reserved = [(XA + 67584, XEND)]
    ring.maxahead = 5
    ring.barrier()
    stamp(e, 'barrier1')
    ring.pump(3)
    ln_finish(e, xs, ring)
    ring.reserved = [(MIMG, 163840)]
    st_ = {}
    gap = defaultdict(list)
    pre = add_norm(gap, 9, TMP + 16, lead=C.attn_lead, ring=ring)
    W = TMP + 24
    e(f's_mul_i32 s{sT0}, s{sSG}, {8*648}')
    e(f's_add_u32 s{sT1}, s{sT0}, 4096')
    e(f'v_lshlrev_b32 v{W+4}, 2, v0')
    for i in range(6):
        e(f'buffer_load_dword a{240+i}, v{W+4}, {srd(S_WPHI)}, s{sT0 if i < 4 else sT1} offen offset:{1024*(i % 4)}')
    wl = e.vm_tok()
    z = [f'v_mov_b32 v{W+i}, 0' for i in range(4)] + [f'v_accvgpr_read_b32 v{W+4}, a150', f'v_accvgpr_read_b32 v{W+5}, a151']
    for i in range(9): z.append(f'ds_write_b128 v{W+4 if i < 8 else W+5}, v[{W}:{W+3}] offset:{4096*i}')
    spread(gap, z, 0, 12)
    sc = [(lambda: e.wait(vm=wl), 4)]
    for i in range(6):
        sc += [f'v_accvgpr_read_b32 v{W+(i%2)}, a{144+i}', f'ds_write_b32 v{W+(i%2)}, a{240+i}']
    vM = W + 3
    sc.append(f'v_accvgpr_read_b32 v{vM}, a138')
    spread(gap, sc, 30, 50)
    pairs = [(T, s) for T, ss in enumerate([range(0, 3), range(0, 5), range(2, 7), range(4, 9), range(6, 9)]) for s in ss]
    rdw = []
    for n, (T, s) in enumerate(pairs):
        for rd in range(2):
            rdw.append(f'ds_read_b64_tr_b16 a[{WPH+4*n+2*rd}:{WPH+4*n+2*rd+1}], v{vM} offset:{(8*s+4*rd)*160 + 32*T}')
    for i, x in enumerate(rdw): gap[66 + i].insert(0, x)
    def rel(): ring.reserved = []
    gap[124].append(rel)
    rl = f'buffer_load_dword v{W+1}, v{W}, {srd(S_DBG)}, 0 offen sc1'
    def rdy1():
        e(f's_lshl_b32 s{sT1}, s{sTILE}, 4\ns_lshl_b32 s{sT2}, s{sWAVE}, 2\ns_add_u32 s{sT1}, s{sT1}, s{sT2}\ns_lshl_b32 s{sT2}, s{sSG}, 2')
        e(f'v_mov_b32 v{W}, s{sT1}')
        e(f'v_writelane_b32 v{W}, s{sT2}, 0')
        e(rl); st_['zp'] = e.vm_tok()
    if C.qtouch:
        gap[218] += [f's_and_b32 s{sT0}, s{sTILE}, 7', f's_lshl_b32 s{sT0}, s{sT0}, 2', f's_add_u32 s{sT0}, s{sT0}, s{sWAVE}', f's_mul_i32 s{sT0}, s{sT0}, {18*3456}',
                     f's_mul_i32 s{sT1}, s{sSG}, 288', f's_add_u32 s{sT0}, s{sT0}, s{sT1}', f'v_accvgpr_read_b32 v{W+4}, a141', 's_nop 0',
                     f'buffer_load_dword v{W+5}, v{W+4}, {srd(S_WQKV)}, s{sT0} offen']
    gap[170].append(rdy1)
    gap[240].append(lambda: poll_check_all(e, rl, W+1, st_['zp'], sT1))
    vPW, vVW, vONE = 7, 8, 9
    qo = [f'v_accvgpr_read_b32 v{vQ[i]}, a{132+i}' for i in range(5)]
    qo += [f'v_accvgpr_read_b32 v{vPW}, a139', f'v_accvgpr_read_b32 v{vVW}, a140', f'v_accvgpr_read_b32 v15, a137',
           (f's_mul_i32 s{sT0}, s{sWAVE}, {32*PHP}\nv_add_u32 v{vPW}, s{sT0}, v{vPW}', 8),
           (f's_mul_i32 s{sT0}, s{sWAVE}, {32*VP}\nv_add_u32 v{vVW}, s{sT0}, v{vVW}', 8), f'v_mov_b32 v{vONE}, 1.0',
           f's_mul_i32 s{sLQ}, s{sWAVE}, 5120', f's_mul_i32 s{sP1}, s{sSG}, {40*16384}', f's_add_u32 s{sP1}, s{sP1}, {WS_P1}']
    spread(gap, qo, 290, 320)
    mf = []
    for ks in range(36):
        kb, v = divmod(ks, 4)
        st = kst[kb]
        for T in range(9):
            off = ring.stages[st].addr + 8*v*576 + 64*T
            acc = f'v[{ACC0+16*T}:{ACC0+16*T+15}]' if T < 5 else f'a[{VA+16*(T-5)}:{VA+16*(T-5)+15}]'
            mf.append(dict(stage=st, reads=tr_reads(vT, off, 4*576), b=X(ks), acc=acc, first=(ks == 0)))
    if C.slotstamps:
        for g_ in (0, 71, 143, 215, 287): gap[g_].append(lambda g_=g_: stamp(e, f'kv gap {g_}'))
    run_stream(e, ring, mf, gap, FR, pre=pre, pre_first=True, dma_max_gap=C.kv_dma_gap)
    stamp(e, 'KV gemm')
    e(f'v_mov_b32 v{vT[0]}, v15')
    e(f'v_add_u32 v{vT[1]}, 65536, v15')
    e(f'v_add_u32 v{vT[2]}, 131072, v15')
    for kb in range(9): qst.append(ring.add(q_stage(qslots[kb % 7], kb)))

    def pack_proj(fill=()):
        fill = list(fill)
        for i in range(36):
            e(f'v_cvt_pk_bf16_f32 v{TMP+16+(i%4)}, v{ACC0+2*i}, v{ACC0+2*i+1}')
            e(f'v_accvgpr_write_b32 a{KP+i}, v{TMP+16+(i%4)}')
            if i % 6 == 5: ring.pump(1)
        seen = set()
        for n, (T, s) in enumerate(pairs):
            d = f'v[{ACC0+16*T}:{ACC0+16*T+15}]'
            e(f'v_mfma_f32_32x32x16_bf16 {d}, a[{WPH+4*n}:{WPH+4*n+3}], a[{KP+4*s}:{KP+4*s+3}], {d if T in seen else 0}')
            seen.add(T)
            for _ in range(5):
                if fill:
                    x = fill.pop(0); x() if callable(x) else e(x)
        for x in fill: x() if callable(x) else e(x)

    def softmax_ops(a, T1, S):
        p = ACC0 + 18*a
        ops = []
        mx, mn = S, S+2
        ops.append(f'v_max3_f32 v{mx}, v{p}, v{p+1}, v{p+2}')
        ops.append(f'v_min3_f32 v{mn}, v{p}, v{p+1}, v{p+2}')
        for i in range(3, 17, 2):
            ops.append(f'v_max3_f32 v{mx}, v{mx}, v{p+i}, v{p+i+1}')
            ops.append(f'v_min3_f32 v{mn}, v{mn}, v{p+i}, v{p+i+1}')
        ops.append(f'v_max_f32 v{mx}, v{mx}, v{p+17}')
        ops.append(f'v_min_f32 v{mn}, v{mn}, v{p+17}')
        for i in range(0, 18, 2):
            ops.append(f'v_pk_add_f32 v[{T1+i}:{T1+i+1}], v[{p+i}:{p+i+1}], v[{mx}:{mx+1}] op_sel_hi:[1,0] neg_lo:[0,1] neg_hi:[0,1]')
            ops.append(f'v_pk_add_f32 v[{p+i}:{p+i+1}], v[{p+i}:{p+i+1}], v[{mn}:{mn+1}] op_sel_hi:[1,0] neg_lo:[1,0] neg_hi:[1,0]')
        for i in range(18):
            ops.append(f'v_exp_f32 v{T1+i}, v{T1+i}')
            ops.append(f'v_exp_f32 v{p+i}, v{p+i}')
        ops.append(f'v_pk_add_f32 v[{mx}:{mx+1}], v[{T1}:{T1+1}], v[{T1+2}:{T1+3}]')
        ops.append(f'v_pk_add_f32 v[{mn}:{mn+1}], v[{p}:{p+1}], v[{p+2}:{p+3}]')
        for i in range(4, 18, 2):
            ops.append(f'v_pk_add_f32 v[{mx}:{mx+1}], v[{mx}:{mx+1}], v[{T1+i}:{T1+i+1}]')
            ops.append(f'v_pk_add_f32 v[{mn}:{mn+1}], v[{mn}:{mn+1}], v[{p+i}:{p+i+1}]')
        ops.append(f'v_add_f32 v{mx}, v{mx}, v{mx+1}')
        ops.append(f'v_add_f32 v{mn}, v{mn}, v{mn+1}')
        ops.append(f'v_rcp_f32 v{mx}, v{mx}')
        ops.append(f'v_rcp_f32 v{mn}, v{mn}')
        ops.append('s_nop 0')
        for i in range(0, 18, 2):
            ops.append(f'v_pk_mul_f32 v[{T1+i}:{T1+i+1}], v[{T1+i}:{T1+i+1}], v[{mx}:{mx+1}] op_sel_hi:[1,0]')
            ops.append(f'v_pk_mul_f32 v[{p+i}:{p+i+1}], v[{p+i}:{p+i+1}], v[{mn}:{mn+1}] op_sel_hi:[1,0]')
        return ops, p

    T1 = ACC0 + 72; S = ACC0 + 90
    for i in range(8): e(f'v_accvgpr_write_b32 a{244+i}, v{ACC0+72+i}')
    def va(idx): return 244 + idx if idx < 8 else VA + idx - 8
    ring.reserved = [(PHI, 163840), (VB, VB + 128*VP)]
    ring.barrier()
    vw = []
    B = TMP + 20
    for a in range(4):
        prs = [(0,1),(2,3),(9,10),(11,12),(4,5),(6,7),(13,14),(15,16),(8,None),None,(17,None),None]
        for m, pr in enumerate(prs):
            d = B + m
            if pr is None:
                if a == 0: vw.append(f'v_mov_b32 v{d}, 0')
            else:
                r0 = TMP + 16 + (2*m) % 4
                vw.append(f'v_accvgpr_read_b32 v{r0}, a{va(18*a+pr[0])}')
                if pr[1] is not None: vw.append(f'v_accvgpr_read_b32 v{r0+1}, a{va(18*a+pr[1])}')
                vw.append(f'v_cvt_pk_bf16_f32 v{d}, v{r0}, v{r0+1 if pr[1] is not None else vONE}')
        for i in range(3): vw.append(f'ds_write_b128 v{vVW}, v[{B+4*i}:{B+4*i+3}] offset:{48*a + 16*i}')
    pack_proj(vw)
    stamp(e, 'proj k + v')
    for a in range(4):
        o, p = softmax_ops(a, T1, S)
        for x in o: e(x)
        for m in range(9): e(f'v_cvt_pk_bf16_f32 v{p+m}, v{p+2*m}, v{p+2*m+1}')
        for m in range(9): e(f'v_cvt_pk_bf16_f32 v{p+9+m}, v{T1+2*m}, v{T1+2*m+1}')
        if a % 2 == 1:
            q0 = p - 18
            for i in range(9): e(f'ds_write_b128 v{vPW}, v[{q0+4*i}:{q0+4*i+3}] offset:{72*(a-1) + 16*i}')
    stamp(e, 'softmax k')
    vA0, vA1, vL0, vL1, vB0 = TMP+16, TMP+17, TMP+18, TMP+19, TMP+20
    e(f's_mul_i32 s{sT0}, s{sWAVE}, 144')
    e(f's_mul_i32 s{sT1}, s{sWAVE}, 96')
    e(f'v_accvgpr_read_b32 v{vA0}, a232\nv_accvgpr_read_b32 v{vL0}, a233\nv_accvgpr_read_b32 v{vB0}, a234')
    e(f'v_add_u32 v{vA0}, s{sT0}, v{vA0}\nv_add_u32 v{vL0}, s{sT0}, v{vL0}\nv_add_u32 v{vB0}, s{sT1}, v{vB0}')
    e(f'v_add_u32 v{vA1}, {64*PHP}, v{vA0}\nv_add_u32 v{vL1}, {64*PHP}, v{vL0}')
    ring.barrier(lg=True)
    stamp(e, 'phi visible')
    OPB = [0, 20, 208]
    KVD = [[132, 168], [148, 184]]
    toks = {}
    def kv_reads(s):
        o = OPB[s % 3]
        hi = s >= 4
        for rd in range(2):
            for h in range(2):
                e(f'ds_read_b64_tr_b16 a[{o+4*h+2*rd}:{o+4*h+2*rd+1}], v{vB0} offset:{(16*s+rd)*VP + 48*h}')
                e(f'ds_read_b64_tr_b16 a[{o+8+4*h+2*rd}:{o+8+4*h+2*rd+1}], v{vA1 if hi else vA0} offset:{(16*(s%4)+rd)*PHP + 72*h}')
            e(f'ds_read_b64_tr_b16 a[{o+16+2*rd}:{o+16+2*rd+1}], v{vL1 if hi else vL0} offset:{(16*(s%4)+rd)*PHP}')
        toks[s] = e.lg_tok()
    kv_reads(0); kv_reads(1)
    for s in range(8):
        e.wait(lg=toks[s])
        if s == 7:
            ring.reserved = []
            ring.barrier()
        o = OPB[s % 3]
        for h in range(2):
            for part in range(2):
                d = KVD[h][part]
                a = o + 8 + 4*h if part == 0 else o + 16
                e(f'v_mfma_f32_32x32x16_bf16 a[{d}:{d+15}], a[{a}:{a+3}], a[{o+4*h}:{o+4*h+3}], {0 if s == 0 else f"a[{d}:{d+15}]"}')
                if s == 7: ring.pump(1)
            if h == 0 and s + 2 < 8: kv_reads(s + 2)
    stamp(e, 'kv mfma')

    gap = defaultdict(list)
    w = TMP + 16
    vZ, vPL, vL4, vFS = w + 2, w + 3, w + 1, w + 12
    RBq = [132 + 4*i for i in range(8)] + [168 + 4*i for i in range(8)]
    RS = w + 4
    sC1, sC2, sU, sPS = 95, 96, 97, 74
    gap[0] += [f's_mul_i32 s{sPS}, s{sWAVE}, {10*16384}', f's_add_u32 s{sPS}, s{sPS}, s{sP1}', f's_lshl_b32 s{sT1}, s{sTILE}, 10', f's_add_u32 s{sPS}, s{sPS}, s{sT1}']
    gap[1] += [f'v_mov_b32 v{vZ}, 0', f'v_mov_b32 v{w}, 1', f'v_accvgpr_read_b32 v{vL4}, a237', f's_lshl_b32 s{sC1}, s{sSG}, 9', f's_add_u32 s{sC1}, s{sC1}, {WS_RF}']
    gap[2] += [f's_lshl_b32 s{sC2}, s{sTILE}, 4', f's_add_u32 s{sC2}, s{sC2}, s{sC1}', f's_lshl_b32 s{sT0}, s{sWAVE}, 2', f's_add_u32 s{sC2}, s{sC2}, s{sT0}']
    gap[3] += [f's_lshl_b32 s{sU}, s{sTILE}, 2', f's_add_u32 s{sU}, s{sU}, s{sWAVE}', f's_min_u32 s{sU}, s{sU}, 39']
    g_ = C.p1_at
    for h in range(2):
        for k in range(5):
            r = KVD[h][0] + 4*k if k < 4 else KVD[h][1] + 4*h
            gap[g_].append(f's_mov_b32 exec_lo, 0x00ffffff\ns_mov_b32 exec_hi, 0x00ffffff\n'
                           f'buffer_store_dwordx4 a[{r}:{r+3}], v{vL16}, {srd(S_WS)}, s{sPS} offen sc1\ns_mov_b64 exec, -1\ns_add_u32 s{sPS}, s{sPS}, 16384')
            g_ += 1
    gap[g_ - 1].append(lambda: st_.__setitem__('p1', e.vm_tok()))
    def sig1():
        e.wait(vm=st_['p1'])
        e(f'buffer_store_dword v{w}, v{vZ}, {srd(S_WS)}, s{sC2} offen sc1')
    gap[C.rs_sig1].append(sig1)
    ld1 = f'buffer_load_dword v{vPL}, v{vL4}, {srd(S_WS)}, s{sC1} offen sc1'
    def pl1(): e(ld1); st_['p'] = e.vm_tok()
    gap[C.rs_poll1].append(pl1)
    def chk1():
        poll_check_all(e, ld1, vPL, st_['p'], sT1)
        e(f's_lshl_b32 s{sT3}, s{sU}, 14')
        e(f's_add_u32 s{sT3}, s{sT3}, s{sP1}')
    c1 = C.rs_poll1 + C.rs_pd
    gap[c1].append(chk1)
    for i in range(16):
        gg = c1 + 1 + i // 2
        if i and i % 4 == 0: gap[gg].append(f's_add_u32 s{sT3}, s{sT3}, 4096')
        gap[gg].append(f'buffer_load_dwordx4 a[{RBq[i]}:{RBq[i]+3}], v{vL16}, {srd(S_WS)}, s{sT3} offen offset:{1024*(i%4)} sc1')
        gap[gg].append(lambda i=i: st_.__setitem__(('r', i), e.vm_tok()))
    fa = [f's_mul_i32 s{sT0}, s{sU}, 52', f's_lshr_b32 s{sT0}, s{sT0}, 8', f's_mul_i32 s{sT1}, s{sT0}, 5', f's_sub_u32 s{sT1}, s{sU}, s{sT1}',
          f's_lshl_b32 s{sPS}, s{sT0}, 11', f's_lshr_b32 s{sT2}, s{sT1}, 1', f's_lshl_b32 s{sT2}, s{sT2}, 10', f's_add_u32 s{sPS}, s{sPS}, s{sT2}',
          f's_and_b32 s{sT2}, s{sT1}, 1', f's_lshl_b32 s{sT2}, s{sT2}, 3', f's_add_u32 s{sPS}, s{sPS}, s{sT2}',
          f's_lshl_b32 s{sT0}, s{sT0}, 9', f's_add_u32 s{sT0}, s{sT0}, 16384',
          f's_cmp_eq_u32 s{sT1}, 4', f's_cselect_b32 s{sPS}, s{sT0}, s{sPS}', f's_cselect_b32 s{sT1}, 3, 4',
          f'v_lshlrev_b32 v{vFS}, s{sT1}, v{vLANE}',
          f's_mul_i32 s{sB2}, s{sSG}, 20480', f's_add_u32 s{sB2}, s{sB2}, {WS_F}', f's_add_u32 s{sPS}, s{sPS}, s{sB2}']
    gap[c1 + 12].append('\n'.join(fa))
    sm = []
    for i in range(16):
        if i % 4 == 0: sm.append((lambda i=i: e.wait(vm=st_['r', i + 3]), 4))
        for k in range(4):
            sm.append(f'v_accvgpr_read_b32 v{RS + (k if i == 0 else 4 + k)}, a{RBq[i]+k}')
        if i:
            for k in range(4): sm.append(f'v_add_f32 v{RS+k}, v{RS+k}, v{RS+4+k}')
    sm += [f'v_cvt_pk_bf16_f32 v{RS+4}, v{RS}, v{RS+1}', f'v_cvt_pk_bf16_f32 v{RS+5}, v{RS+2}, v{RS+3}',
           f'buffer_store_dwordx2 v[{RS+4}:{RS+5}], v{vFS}, {srd(S_WS)}, s{sPS} offen sc1',
           (lambda: st_.__setitem__('f', e.vm_tok()), 0)]
    s0 = c1 + C.rs_ld
    spread(gap, sm, s0, s0 + C.rs_sum)
    def sig2():
        e.wait(vm=st_['f'])
        e(f'buffer_store_dword v6, v7, {srd(S_WS)}, s{sC2} offen offset:256 sc1')
    mfq = []
    for ks in range(36):
        kb, v = divmod(ks, 4)
        st = qst[kb]
        for T in range(5):
            off = ring.stages[st].addr + 8*v*320 + 64*T
            a = ACC0 + 16*T
            mfq.append(dict(stage=st, reads=tr_reads(vT, off, 4*320), b=X(ks), acc=f'v[{a}:{a+15}]', first=(ks == 0)))
    if C.slotstamps:
        for g_ in (11, 22, C.rs_sig1 - 1, C.rs_sig1 + 1, c1 - 1, c1 + 1, s0 - 1): gap[g_].append(lambda g_=g_: stamp(e, f'q gap {g_}'))
    run_stream(e, ring, mfq, gap, FR, dma_max_gap=C.q_dma_gap)
    stamp(e, 'Q gemm')
    e(f'v_mov_b32 v6, 1\nv_mov_b32 v7, 0\nv_mov_b32 v2, v{vL4}')
    KA = 168
    def KAf(h): return 168 + 12*h if h < 5 else 0 + 12*(h - 5)
    zf = []
    for h in range(8):
        for i in range(4):
            if i != h % 4: zf.append(f'v_accvgpr_write_b32 a{KAf(h)+8+i}, 0')
    zf += [f'v_accvgpr_read_b32 v3, a235', f'v_accvgpr_read_b32 v5, a236', f's_mul_i32 s{sT0}, s{sWAVE}, 5120', f's_add_u32 s{sB2}, s{sB2}, s{sT0}']
    if C.sig2_early: sig2()
    pack_proj(zf)
    if not C.sig2_early: sig2()
    stamp(e, 'proj q')
    PQ = X0; L0 = X0 + 64; L1 = X0 + 68
    KF = X0 + 72
    vPOLL = 4
    def sm_q(a):
        o, p = softmax_ops(a, T1, S)
        for x in o: e(x)
        def dst(m): return PQ + 16*a + m if m < 16 else (L0 + a if m == 16 else L1 + a)
        for m in range(9): e(f'v_cvt_pk_bf16_f32 v{dst(m)}, v{p+2*m}, v{p+2*m+1}')
        for m in range(9): e(f'v_cvt_pk_bf16_f32 v{dst(9+m)}, v{T1+2*m}, v{T1+2*m+1}')
        for m in (0, 1, 2, 3, 8, 9, 10, 11): e(f'v_permlane32_swap_b32 v{PQ+16*a+m}, v{PQ+16*a+m+4}')
        e(f'v_permlane32_swap_b32 v{L0+a}, v{L1+a}')
    ld2 = f'buffer_load_dword v{vPOLL}, v2, {srd(S_WS)}, s{sC1} offen offset:256 sc1'
    for a in range(4):
        if a == C.poll2_at: e(ld2); pt = e.vm_tok()
        if a == C.poll2_at + 1:
            poll_check_all(e, ld2, vPOLL, pt, sT1)
            stamp(e, 'kv ready')
            for i in range(5):
                e(f's_add_u32 m0, s{sLQ}, {FL + (4096 if i == 4 else 0)}')
                e(f's_add_u32 s{sB2}, s{sB2}, 4096' if i == 4 else 's_nop 0')
                e(f'buffer_load_dwordx4 v{vL16}, {srd(S_WS)}, s{sB2} offen offset:{1024*(i % 4)} sc1 lds')
            ft = e.vm_tok()
        sm_q(a)
    stamp(e, 'softmax q')
    e.wait(vm=ft)
    e('s_barrier')
    kt = {}
    for h in range(8):
        for u in range(2):
            e(f'ds_read_b128 a[{KAf(h)+4*u}:{KAf(h)+4*u+3}], v5 offset:{2048*h + 1024*u}')
        e(f'ds_read_b32 a{KAf(h)+8+(h%4)}, v3 offset:{512*h}')
        kt[h] = e.lg_tok()
    def OD(h): return ACC0 + 16*h if h < 5 else KF + 16*(h - 5)
    e(f's_mul_i32 s{sT0}, s{sSG}, 9216')
    e(f's_add_u32 s{sT0}, s{sT0}, s{sXOFF}')
    e(f's_add_u32 s{sT0}, s{sT0}, {WS_O}')
    OP_ = KF + 48
    def opq(s): return OP_ + 4*s if s < 6 else TMP + 16 + 4*(s - 6)
    def oreg(idx): return OD(idx // 9) + idx % 9
    post = []
    done = [0]
    def finish_ops(h):
        d = OD(h)
        ops = [f'v_add_f32 v{d+10}, {f32(1e-6)}, v{d+9}', f'v_rcp_f32 v{d+10}, v{d+10}', 's_nop 0']
        ops += [f'v_mul_f32 v{d+i}, v{d+i}, v{d+10}' for i in range(9)]
        while 8*(done[0] + 1) <= 9*(h + 1):
            s = done[0]
            for i in range(4): ops.append(f'v_cvt_pk_bf16_f32 v{opq(s)+i}, v{oreg(8*s+2*i)}, v{oreg(8*s+2*i+1)}')
            if s and s % 4 == 0: ops.append(f's_add_u32 s{sT0}, s{sT0}, 4096')
            ops.append(f'buffer_store_dwordx4 v[{opq(s)}:{opq(s)+3}], v{vL16}, {srd(S_WS)}, s{sT0} offen offset:{1024*(s%4)} sc1')
            done[0] += 1
        return ops
    for h in range(8):
        e.wait(lg=kt[h])
        a, up = h % 4, h // 4
        d = f'v[{OD(h)}:{OD(h)+15}]'
        for step in range(3):
            b = PQ + 16*a + 8*step + 4*up if step < 2 else (L1 if up else L0)
            af = KAf(h) + 4*step
            e(f'v_mfma_f32_32x32x16_bf16 {d}, a[{af}:{af+3}], v[{b}:{b+3}], {0 if step == 0 else d}')
            for _ in range(6):
                if post: e(post.pop(0))
        if h >= 1: post += finish_ops(h - 1)
    post += finish_ops(7)
    for x in post: e(x)
    assert done[0] == 9
    stamp(e, 'o issued')
    e.wait_all()
    e(f'buffer_store_dword v6, v7, {srd(S_WS)}, s{sMYF} offen sc1')
    stamp_flush(e)
    e('s_endpgm')
```

```python
import sys, struct
from asmlib import *
from engine import *
from collections import defaultdict

NAME = 'recurrent_scan__linear_kernel_hedgehog__dense_activation_silu__prompt'
LOG2E = 1.4426950408889634
LN2 = 0.6931471805599453
def f32(x): return '0x%08x' % struct.unpack('<I', struct.pack('<f', x))[0]

class Cfg:
    stamps = False
    code_touch = True
    ffn_lead = 30
    attn_lead = 28
C = Cfg()

WS_P = 0
P_Q = 12 * 16384; P_TILE = 9 * P_Q
WS_O = 16 * P_TILE
WS_P1 = WS_O + 64 * 36864
WS_F = WS_P1 + 4 * 40 * 16384
WS_FLG = WS_F + 4 * 24 * 1024
WS_RF = WS_FLG + 64 * 128
WS_DBG = WS_RF + 2048
WS_SIZE = 268435456
WS_USED = WS_DBG + (1 << 20)
OOB = 0x40000000

S_X, S_W1, S_W2, S_WS, S_WQKV, S_WPHI, S_WO, S_DBG, S_OUT = 8, 12, 16, 20, 24, 28, 32, 36, 4
sWAVE, sTILE, sROLE, sSG = 40, 41, 42, 43
sXOFF = 44
sONES, sMASK = 45, 46
sLDSW = 47
sB1, sB2 = 48, 49
sT0, sT1, sT2, sT3 = 50, 51, 52, 53
sSOFF = 54
sFLG = 55
sST = 56
sA0, sA1 = 57, 62
sPC = 60
sMY = 63
sRDY = 99
sROT = 3
sQ = 84
def srd(b): return f's[{b}:{b+3}]'

vLANE = 1
vL16 = 14
X0 = 16
ACC0 = 160
TMP = 224
def X(ks): return f'v[{X0+4*ks}:{X0+4*ks+3}]'

XA = 6144
XC = XA + 2*67584
XEND = XC + 16384
XAD = ACC0
LNS = ACC0 + 8
LNC = TMP + 30

_stamp_n = [0]
def stamp(e, name=''):
    if not C.stamps or (C.stamps == 2 and name not in ('start', 'end')): return
    i = _stamp_n[0]; _stamp_n[0] += 1
    assert i < 32
    e('s_memtime s[58:59]')
    e('s_memrealtime s[100:101]')
    e('s_waitcnt lgkmcnt(0)'); e.lg_done = e.lg_n
    e('v_accvgpr_write_b32 a254, v0')
    e(f'v_accvgpr_read_b32 v0, a255')
    e(f'v_writelane_b32 v0, s58, {2*i}')
    e(f'v_writelane_b32 v0, s100, {2*i+1}')
    e('v_accvgpr_write_b32 a255, v0')
    e(f'v_accvgpr_read_b32 v0, a254')
def stamp_flush(e):
    if not C.stamps: return
    stamp(e, 'end')
    e(f's_lshl_b32 s58, s2, 2\ns_add_u32 s58, s58, s{sWAVE}\ns_lshl_b32 s58, s58, 8\ns_add_u32 s58, s58, {WS_DBG}')
    e(f'v_lshlrev_b32 v0, 2, v{vLANE}')
    e(f'buffer_store_dword a255, v0, {srd(S_WS)}, s58 offen')

def bf16_round(e, dst, src):
    e(f'v_cvt_pk_bf16_f32 v{dst}, v{src}, v{src}')
    e(f'v_and_b32 v{dst}, s{sMASK}, v{dst}')

def lane_addr_ops(dst, A, B, C_, D, E_, tmp, B2=0):
    ops = []
    first = True
    for (sh, w, k) in ((5, 1, A), (2, 2, B), (0, 1, C_), (4, 1, D), (1, 1, E_), (3, 1, B2)):
        if k == 0: continue
        ops.append(f'v_bfe_u32 v{tmp}, v{vLANE}, {sh}, {w}')
        if first:
            ops.append(f'v_mul_u32_u24 v{dst}, {k}, v{tmp}'); first = False
        elif k & (k - 1) == 0:
            ops.append(f'v_lshl_add_u32 v{dst}, v{tmp}, {k.bit_length()-1}, v{dst}')
        else:
            ops.append(f'v_mul_u32_u24 v{tmp}, {k}, v{tmp}'); ops.append(f'v_add_u32 v{dst}, v{dst}, v{tmp}')
    return ops

def panel_traddr_ops(half_stride, regs, t):
    ops = lane_addr_ops(regs[0][0], half_stride, 128, 64, 16, 8, t, B2=32)
    ops.append(f'v_xor_b32 v{regs[1][0]}, 32, v{regs[0][0]}')
    for tt in range(2):
        for w in range(1, len(regs[tt])):
            ops.append(f'v_add_u32 v{regs[tt][w]}, {65536*w}, v{regs[tt][0]}')
    return ops

def panel_voffset_ops(regs, ldw, t):
    ops = [f'v_lshrrev_b32 v{t}, 3, v{vLANE}', f'v_mul_u32_u24 v{t}, {ldw}, v{t}', f'v_and_b32 v{t+1}, 7, v{vLANE}',
           f'v_lshrrev_b32 v{t+2}, 3, v{vLANE}', f'v_and_b32 v{t+2}, 2, v{t+2}', f'v_xor_b32 v{t+1}, v{t+1}, v{t+2}',
           f'v_lshl_add_u32 v{regs[0]}, v{t+1}, 4, v{t}']
    for i in range(1, len(regs)):
        ops.append(f'v_add_u32 v{regs[i]}, {8*ldw-1024}, v{regs[i-1]}')
    return ops

def tr_reads(regs, off, second):
    def fn(k, f):
        out = []
        for i, o in enumerate((off, off + second)):
            w, oo = divmod(o, 65536)
            out.append(f'ds_read_b64_tr_b16 {k}[{f+2*i}:{f+2*i+1}], v{regs[w]} offset:{oo}')
        return out
    return fn

class Table:
    def __init__(self): self.lane = {0: [], 1: []}; self.thr = {0: [], 1: []}
    def text(self):
        out = []
        for role in (0, 1):
            out.append(f'.p2align 7\nL_tab{role}:')
            for g in self.lane[role] + [[lambda l: 0]*4] * (NLG - len(self.lane[role])):
                for l in range(64): out.append('.long ' + ', '.join('0x%x' % (f(l) & 0xffffffff) for f in g))
            for g in self.thr[role] + [[lambda w, l: 0]*4] * (NTG - len(self.thr[role])):
                for w in range(4):
                    for l in range(64): out.append('.long ' + ', '.join('0x%x' % (f(w, l) & 0xffffffff) for f in g))
        out.append('L_tabend:')
        return '\n'.join(out) + '\n'
TAB = Table()
NLG, NTG = 8, 3
LG_DST = ['v[2:5]', 'v[6:9]', 'v[10:13]', 'a[132:135]', 'a[136:139]', 'a[224:227]', 'a[228:231]', 'a[140:143]']
LG_DST_ATT = ['v[2:5]', 'v[6:9]', 'v[10:13]', 'a[132:135]', 'a[136:139]', 'a[232:235]', 'a[236:239]', 'a[140:143]']
TG_DST = ['a[144:147]', 'a[148:151]', 'a[152:155]']
def lane_fn(A, B, C_, D, E_, B2=0, K=0):
    return lambda l: (l >> 5)*A + ((l >> 2) & 3)*B + (l & 1)*C_ + ((l >> 4) & 1)*D + ((l >> 1) & 1)*E_ + ((l >> 3) & 1)*B2 + K

def prologue(e, early):
    e('s_cmp_ge_u32 s2, 256\ns_cbranch_scc0 L_go\ns_endpgm\nL_go:')
    if C.stamps:
        e('v_accvgpr_write_b32 a255, 0')
        stamp(e, 'start')
    e('s_load_dwordx16 s[64:79], s[0:1], 0')
    e('s_load_dwordx4 s[80:83], s[0:1], 64')
    e(f's_getpc_b64 s[{sPC}:{sPC+1}]')
    e('L_pc:')
    t = TMP
    e(f'v_lshrrev_b32 v{t}, 6, v0')
    e(f'v_and_b32 v{vLANE}, 63, v0')
    e(f'v_readfirstlane_b32 s{sWAVE}, v{t}')
    e(f's_and_b32 s{sT0}, s2, 7')
    e(f's_lshr_b32 s{sT1}, s2, 3')
    e(f's_lshr_b32 s{sSG}, s{sT0}, 1')
    e(f's_and_b32 s{sT0}, s{sT0}, 1')
    e(f's_lshl_b32 s{sT0}, s{sT0}, 3')
    e(f's_and_b32 s{sT2}, s{sT1}, 7')
    e(f's_add_u32 s{sTILE}, s{sT0}, s{sT2}')
    e(f's_lshr_b32 s{sROLE}, s{sT1}, 3')
    e(f'v_lshlrev_b32 v{vL16}, 4, v{vLANE}')
    e(f'v_lshlrev_b32 v{t+5}, 4, v0')
    e(f's_cmp_eq_u32 s{sROLE}, 3')
    e(f's_cselect_b32 s{sT0}, L_tab1-L_tab0, 0')
    e(f's_add_u32 s{sT0}, s{sT0}, L_tab0-L_pc+4096')
    e(f's_add_u32 s96, s{sPC}, s{sT0}')
    e(f's_addc_u32 s97, s{sPC+1}, 0')
    if C.code_touch:
        e(f'v_min_u32 v{t+6}, 7, v{vLANE}')
        e(f'v_lshl_add_u32 v{t+6}, v{t}, 3, v{t+6}')
        e(f's_lshl_b32 s{sT1}, s{sT1}, 5')
        e(f'v_add_u32 v{t+6}, s{sT1}, v{t+6}')
        e(f'v_lshlrev_b32 v{t+6}, 7, v{t+6}')
        e(f'v_min_u32 v{t+6}, L_tabend-L_pc-4, v{t+6}')
        e(f'global_load_dword v{t+7}, v{t+6}, s[{sPC}:{sPC+1}]')
    e(f's_mul_i32 s{sMY}, s{sSG}, 3')
    e(f's_add_u32 s{sMY}, s{sMY}, s{sROLE}')
    e(f's_add_u32 s{sT0}, s{sSG}, 12')
    e(f's_cmp_eq_u32 s{sROLE}, 3')
    e(f's_cselect_b32 s{sMY}, s{sT0}, s{sMY}')
    e(f's_lshl_b32 s{sT0}, s{sTILE}, 2')
    e(f's_add_u32 s{sT0}, s{sT0}, s{sWAVE}')
    e(f's_mul_i32 s{sXOFF}, s{sT0}, {32*1152}')
    e(f's_lshl_b32 s{sFLG}, s{sT0}, 7')
    e(f's_add_u32 s{sFLG}, s{sFLG}, {WS_FLG}')
    e(f's_mov_b32 s{sONES}, 0x3f803f80')
    e(f's_mov_b32 s{sMASK}, 0xffff0000')
    vA, vC0, vC1, vB = TMP+24, TMP+25, TMP+26, TMP+27
    e(f's_and_b32 s{sT0}, s{sTILE}, 7')
    e(f's_mul_i32 s{sT1}, s{sT0}, 86')
    e(f's_lshr_b32 s{sT1}, s{sT1}, 8')
    e(f's_mul_i32 s{sT1}, s{sT1}, 3')
    e(f's_sub_u32 s{sT1}, s{sT0}, s{sT1}')
    e(f's_mul_i32 s{sT1}, s{sT1}, {3 if C.rot_f else 0}')
    if not C.rot_a: e(f's_mov_b32 s{sT0}, 0')
    e(f's_cmp_eq_u32 s{sROLE}, 3')
    e(f's_cselect_b32 s{sROT}, s{sT0}, s{sT1}')
    e(f's_lshl_b32 s{sT0}, s{sROT}, 3')
    e(f'v_lshrrev_b32 v{t}, 5, v{vLANE}')
    e(f'v_and_b32 v{t+1}, 31, v{vLANE}')
    e(f'v_xor_b32 v{t+1}, v{t+1}, v{t}')
    e(f'v_mul_u32_u24 v{t}, 1152, v{t}')
    e(f'v_add_u32 v{t+1}, s{sT0}, v{t+1}')
    e(f'v_subrev_u32 v{t+2}, 72, v{t+1}')
    e(f'v_min_u32 v{t+2}, v{t+1}, v{t+2}')
    e(f'v_lshl_add_u32 v{vA}, v{t+2}, 4, v{t}')
    e(f'v_add_u32 v{t+1}, 32, v{t+1}')
    e(f'v_subrev_u32 v{t+2}, 72, v{t+1}')
    e(f'v_min_u32 v{t+2}, v{t+1}, v{t+2}')
    e(f'v_lshl_add_u32 v{vB}, v{t+2}, 4, v{t}')
    e(f's_sub_u32 s{sT0}, s{sROT}, 1')
    e(f's_cselect_b32 s{sT0}, 8, s{sT0}')
    e(f's_lshl_b32 s{sT0}, s{sT0}, 7')
    e(f'v_lshrrev_b32 v{t}, 3, v{vLANE}')
    e(f'v_mul_u32_u24 v{t}, 1152, v{t}')
    e(f'v_add_u32 v{t}, s{sT0}, v{t}')
    e(f'v_and_b32 v{t+1}, 7, v{vLANE}')
    e(f'v_lshrrev_b32 v{t+2}, 4, v{vLANE}')
    e(f'v_xor_b32 v{t+1}, v{t+1}, v{t+2}')
    e(f'v_lshl_add_u32 v{vC0}, v{t+1}, 4, v{t}')
    e(f's_and_b32 s{sT0}, s{sROLE}, 1')
    e(f's_lshl_b32 s{sT0}, s{sT0}, 6')
    e(f'v_xor_b32 v{vC0}, s{sT0}, v{vC0}')
    e(f'v_xor_b32 v{vC1}, 64, v{vC0}')
    e(f's_mul_i32 s{sLDSW}, s{sWAVE}, 16896')
    e(f's_lshl_b32 s{sT3}, s{sWAVE}, 12')
    for n in range(4):
        e(f's_add_u32 s{sT0}, s{sROLE}, {n}')
        e(f's_and_b32 s{sT0}, s{sT0}, 3')
        e(f's_mul_i32 s{sT1}, s{sT0}, 9216')
        e(f's_add_u32 s{sQ+n}, s{sXOFF}, s{sT1}')
        e(f's_mul_i32 s{sT1}, s{sT0}, 4224')
        e(f's_add_u32 s{sQ+4+n}, s{sLDSW}, s{sT1}')
        e(f's_lshl_b32 s{sT1}, s{sT0}, 10')
        e(f's_add_u32 s{sQ+8+n}, s{sT3}, s{sT1}')
    e('s_waitcnt lgkmcnt(0)')
    def mksrd(b, p, nbytes): e(f's_mov_b32 s{b}, s{p}\ns_mov_b32 s{b+1}, s{p+1}\ns_mov_b32 s{b+2}, {nbytes}\ns_mov_b32 s{b+3}, 0x20000')
    stamp(e, 'kernarg')
    mksrd(S_X, 64, 2048*576*2)
    def ab(part, n, j):
        imm = 2304*(j & 1)
        so = f's{sQ+n}' if j < 2 else f's{sSOFF}'
        it = [f's_add_u32 m0, s{sQ+4+n}, {XA + part*67584 + 1056*j - imm}']
        it.append(f's_add_u32 s{sSOFF}, s{sQ+n}, 4608' if j == 2 else 's_nop 0')
        it.append(f'buffer_load_dwordx4 v{vB if part else vA}, {srd(S_X)}, {so} offen offset:{imm} lds')
        return it
    def cc(n):
        return [f's_add_u32 m0, s{sQ+8+n}, {XC}', 's_nop 0', f'buffer_load_dwordx4 v{[vC0, vC1][n & 1]}, {srd(S_X)}, s{sQ+n} offen lds']
    own = [ab(0, 0, j) for j in range(4)] + [ab(1, 0, j) for j in range(4)] + [cc(0)]
    restA = [ab(0, n, j) for n in range(1, 4) for j in range(4)]
    restB = [ab(1, n, j) for n in range(1, 4) for j in range(4)] + [cc(n) for n in range(1, 4)]
    if not C.early_first:
        for it in own:
            for x in it: e(x)
        stamp(e, 'own issued')
    for g in range(NLG):
        e(f'global_load_dwordx4 {LG_DST_ATT[g]}, v{vL16}, s[96:97] offset:{1024*g - 4096}')
    for g in range(NTG):
        e('s_add_u32 s96, s96, 4096\ns_addc_u32 s97, s97, 0')
        e(f'global_load_dwordx4 {TG_DST[g]}, v{t+5}, s[96:97]')
    for (b, p, nbytes) in [(S_WQKV, 66, 576*1728*2), (S_WPHI, 68, 32*18*18*2), (S_WO, 70, 576*576*2),
                           (S_W1, 74, 576*4608*2), (S_W2, 76, 576*4608*2), (S_OUT, 78, 2048*576*2), (S_DBG, 80, 256), (S_WS, 82, WS_USED)]:
        mksrd(b, p, nbytes)
    z = TMP + 12
    e(f'v_mov_b32 v{z}, 0\nv_mov_b32 v{z+1}, 0')
    e(f'v_lshlrev_b32 v{z+2}, 3, v{vLANE}')
    e(f'v_and_b32 v{z+3}, 0x78, v{z+2}')
    e(f's_lshl_b32 s{sT0}, s{sTILE}, 2')
    e(f's_add_u32 s{sT0}, s{sT0}, s{sSG}')
    e(f's_lshl_b32 s{sRDY}, s{sT0}, 2')
    e(f's_lshl_b32 s{sT0}, s{sT0}, 7')
    e(f's_add_u32 s{sT0}, s{sT0}, {WS_FLG}')
    e(f's_lshl_b32 s{sT1}, s{sSG}, 9')
    e(f's_add_u32 s{sT1}, s{sT1}, {WS_RF}')
    e(f's_cmp_eq_u32 s{sTILE}, 0')
    e(f's_cselect_b32 s{sT1}, s{sT1}, {OOB}')
    e(f's_lshl_b32 s{sT2}, s{sWAVE}, 2')
    e(f's_add_u32 s{sT2}, s{sT2}, s{sROLE}')
    e(f's_cmp_eq_u32 s{sT2}, 3')
    e(f's_cselect_b32 s{sT0}, s{sT0}, {OOB}')
    e(f's_cselect_b32 s{sT1}, s{sT1}, {OOB}')
    e(f's_cselect_b32 s{sRDY}, s{sRDY}, {OOB}')
    e(f'buffer_store_dwordx2 v[{z}:{z+1}], v{z+3}, {srd(S_WS)}, s{sT0} offen sc1')
    e(f'buffer_store_dwordx2 v[{z}:{z+1}], v{z+2}, {srd(S_WS)}, s{sT1} offen sc1')
    early(e)
    if C.early_first:
        for it in own:
            for x in it: e(x)
        stamp(e, 'own issued')
    be, bo, bc = XAD, XAD+1, XAD+2
    e(f'v_bfe_u32 v{t}, v{vLANE}, 1, 4')
    e(f'v_mul_u32_u24 v{t+1}, 1056, v{t}')
    e(f'v_and_b32 v{t+2}, 1, v{vLANE}')
    e(f'v_lshl_add_u32 v{t+1}, v{t+2}, 9, v{t+1}')
    e(f'v_lshrrev_b32 v{t+3}, 5, v{vLANE}')
    e(f'v_lshl_add_u32 v{t+1}, v{t+3}, 6, v{t+1}')
    e(f'v_add_u32 v{t+1}, s{sLDSW}, v{t+1}')
    e(f'v_lshlrev_b32 v{t+2}, 4, v{t+2}')
    e(f'v_add_u32 v{be}, v{t+1}, v{t+2}')
    e(f'v_sub_u32 v{bo}, v{t+1}, v{t+2}')
    e(f'v_add_u32 v{be+6}, 67584, v{be}')
    e(f'v_add_u32 v{bo+6}, 67584, v{bo}')
    e(f'v_and_b32 v{t}, 7, v{t}')
    e(f'v_lshlrev_b32 v{t+3}, 2, v{t+3}')
    e(f'v_xor_b32 v{t}, v{t}, v{t+3}')
    e(f'v_and_b32 v{t+1}, 31, v{vLANE}')
    e(f'v_lshlrev_b32 v{t+1}, 7, v{t+1}')
    e(f'v_lshl_add_u32 v{t+1}, v{t}, 4, v{t+1}')
    e(f'v_add_u32 v{t+1}, {XC}, v{t+1}')
    e(f'v_add_u32 v{bc}, s{sT3}, v{t+1}')
    for v in range(1, 4): e(f'v_xor_b32 v{bc+v}, {16*v}, v{bc}')
    s1 = [LNS, LNS+1]; s2 = [LNS+2, LNS+3]
    for r in s1 + s2: e(f'v_mov_b32 v{r}, 0')
    for it in restA:
        for x in it: e(x)
    tokA = e.vm_tok()
    stamp(e, 'restA issued')
    NB = C.nb_pre
    for it in restB[:NB]:
        for x in it: e(x)
    lt = {}
    def rd(ks):
        p, v = divmod(ks, 4)
        if p < 8:
            e(f'ds_read_b128 {X(ks)}, v{(bo if v & 1 else be) + 6*(p >> 2)} offset:{XA + 128*(p & 3) + 16*v}')
        else:
            e(f'ds_read_b128 {X(ks)}, v{bc+v}')
        lt[ks] = e.lg_tok()
    def p1(ks):
        e.wait(lg=lt[ks])
        for i in range(4):
            r = X0 + 4*ks + i
            e(f'v_dot2c_f32_bf16 v{s1[i%2]}, s{sONES}, v{r}')
            e(f'v_dot2c_f32_bf16 v{s2[i%2]}, v{r}, v{r}')
    e.wait(vm=tokA)
    stamp(e, 'xA landed')
    e(f'v_mov_b32 v{z+1}, 1')
    e(f'buffer_store_dword v{z+1}, v{z}, {srd(S_DBG)}, s{sRDY} offen sc1')
    rb = restB[NB:]
    for ks in range(16):
        rd(ks)
        if ks % 4 == 3 and rb:
            for x in rb.pop(0): e(x)
    for ks in range(16):
        if rb:
            for x in rb.pop(0): e(x)
        p1(ks)
    assert not rb
    tokB = e.vm_tok()
    e(f's_and_b32 s{sT0}, s{sTILE}, 3')
    e(f's_mul_i32 s{sT0}, s{sT0}, {3 if C.vrot else 0}')
    e(f's_add_u32 s{sT0}, s{sT0}, s{sMY}')
    e(f's_cmp_ge_u32 s{sT0}, 12')
    e(f's_cselect_b32 s{sT1}, 12, 0')
    e(f's_sub_u32 s72, s{sT0}, s{sT1}')
    e(f's_cmp_eq_u32 s{sROLE}, 3')
    e(f's_cselect_b32 s72, s{sMY}, s72')
    e(f's_lshl_b32 s{sT0}, s72, 2')
    e(f's_add_u32 s{sA1}, s{sFLG}, s{sT0}')
    return dict(tokB=tokB, rd=rd, p1=p1)

_lbl = [0]
TAILCODE = []
def poll_check(e, load_text, vdst, tok, need, stmp):
    n = _lbl[0]; _lbl[0] += 1
    e.wait(vm=tok)
    e(f'v_readfirstlane_b32 s{stmp}, v{vdst}')
    e(f's_cmp_ge_u32 s{stmp}, {need}')
    e(f's_cbranch_scc0 L_sp{n}')
    e(f'L_ok{n}:')
    TAILCODE.append(f'L_sp{n}:\ns_sleep 1\n{load_text}\ns_waitcnt vmcnt(0)\nv_readfirstlane_b32 s{stmp}, v{vdst}\ns_nop 1\ns_cmp_ge_u32 s{stmp}, {need}\ns_cbranch_scc0 L_sp{n}\ns_branch L_ok{n}')

def poll_check_all(e, load_text, vdst, tok, stmp):
    n = _lbl[0]; _lbl[0] += 1
    e.wait(vm=tok)
    e(f'v_cmp_ne_u32 vcc, 0, v{vdst}')
    e(f's_cmp_eq_u64 vcc, -1')
    e(f's_cbranch_scc0 L_sp{n}')
    e(f'L_ok{n}:')
    TAILCODE.append(f'L_sp{n}:\ns_sleep 2\n{load_text}\ns_waitcnt vmcnt(0)\nv_cmp_ne_u32 vcc, 0, v{vdst}\ns_nop 1\ns_cmp_eq_u64 vcc, -1\ns_cbranch_scc0 L_sp{n}\ns_branch L_ok{n}')

def ln_finish(e, xs, ring, touches=()):
    e.wait(vm=xs['tokB'])
    stamp(e, 'x all landed')
    for ks in range(16, 36): xs['rd'](ks)
    for ks in range(16, 36):
        if ks % 2: ring.pump(1)
        xs['p1'](ks)
    s1 = [LNS, LNS+1]; s2 = [LNS+2, LNS+3]
    a, b, c, d = LNS+4, LNS+5, LNS+6, LNS+7
    e(f'v_add_f32 v{a}, v{s1[0]}, v{s1[1]}')
    e(f'v_add_f32 v{c}, v{s2[0]}, v{s2[1]}')
    e(f'v_mov_b32 v{b}, v{a}')
    e(f'v_mov_b32 v{d}, v{c}')
    ring.pump(1)
    e(f'v_permlane32_swap_b32 v{a}, v{b}')
    e(f'v_permlane32_swap_b32 v{c}, v{d}')
    e(f'v_add_f32 v{a}, v{a}, v{b}')
    e(f'v_add_f32 v{c}, v{c}, v{d}')
    e(f'v_mul_f32 v{a}, {f32(1.0/576)}, v{a}')
    e(f'v_mul_f32 v{c}, {f32(1.0/576)}, v{c}')
    e(f'v_fma_f32 v{c}, -v{a}, v{a}, v{c}')
    e(f'v_max_f32 v{c}, 0, v{c}')
    bf16_round(e, b, a)
    bf16_round(e, c, c)
    e(f'v_add_f32 v{c}, {f32(1e-5)}, v{c}')
    bf16_round(e, c, c)
    e(f'v_sqrt_f32 v{c}, v{c}')
    bf16_round(e, c, c)
    e(f'v_rcp_f32 v{c}, v{c}')
    ring.pump(1)
    e(f'v_mul_f32 v{LNC}, {f32(LOG2E)}, v{c}')
    e(f'v_mul_f32 v{LNC+1}, -v{b}, v{LNC}')
    ring.pump(C.pre_touch_pump)
    for x in touches: e(x)
    stamp(e, 'stats done')

def norm_ops(ks, T, pk=False):
    Cc, NB = LNC, LNC + 1
    ops = []
    for i in range(4):
        r = X0 + 4*ks + i
        ops.append(f'v_lshlrev_b32 v{T+2*i}, 16, v{r}')
        ops.append(f'v_and_b32 v{T+2*i+1}, s{sMASK}, v{r}')
    if pk:
        for i in range(4):
            ops.append(f'v_pk_fma_f32 v[{T+2*i}:{T+2*i+1}], v[{T+2*i}:{T+2*i+1}], v[{Cc}:{Cc+1}], v[{Cc}:{Cc+1}] op_sel:[0,0,1] op_sel_hi:[1,0,1]')
    else:
        for i in range(8):
            ops.append(f'v_fma_f32 v{T+i}, v{T+i}, v{Cc}, v{NB}')
    for i in range(4):
        ops.append(f'v_cvt_pk_bf16_f32 v{X0+4*ks+i}, v{T+2*i}, v{T+2*i+1}')
    return ops

def add_norm(gap, per_ks, T, lead=2, ring=None):
    pre = []
    for ks in range(lead):
        pre += norm_ops(ks, T, pk=True)
        if ring is not None and ks % 2 == 1: pre.append(lambda: ring.pump(1))
    n = 36 - lead
    for i, ks in enumerate(range(lead, 36)):
        g0 = int(i * (35 * per_ks - 2) / n); g1 = int((i + 1) * (35 * per_ks - 2) / n)
        assert g1 <= ks * per_ks - 1 or True
        g1 = min(g1, ks * per_ks - 1); g0 = min(g0, g1 - 1)
        spread(gap, norm_ops(ks, T), g0, g1)
    return pre

def code_touch_op(label, dst, vtmp):
    return [f'v_lshlrev_b32 v{vtmp}, 7, v{vLANE}', f'v_add_u32 v{vtmp}, {label}-L_pc, v{vtmp}', f'v_min_u32 v{vtmp}, L_tabend-L_pc-4, v{vtmp}',
            f'global_load_dword v{dst}, v{vtmp}, s[{sPC}:{sPC+1}]']
```

```python
from collections import defaultdict, deque
from asmlib import *

class Stage:
    def __init__(self, addr, size, items, name=''):
        self.addr = addr; self.size = size
        self.items = items
        self.tok = None
        self.name = name
        self.published = False

class Ring:
    def __init__(self, em):
        self.em = em
        self.stages = []
        self.released = 0
        self.queued = 0
        self.q = deque()
        self.reserved = []
        self.consumed = 0
        self.maxahead = None
    def add(self, st):
        self.stages.append(st); return len(self.stages) - 1
    def _free(self, st):
        lo, hi = st.addr, st.addr + st.size
        for j in range(self.released, self.queued):
            o = self.stages[j]
            if lo < o.addr + o.size and o.addr < hi: return False
        for (a, b) in self.reserved:
            if lo < b and a < hi: return False
        return True
    def refill(self, limit=None):
        n = 0
        while self.queued < len(self.stages) and self._free(self.stages[self.queued]) and (limit is None or n < limit) and (self.maxahead is None or self.queued - self.released < self.maxahead + 2):
            st = self.stages[self.queued]
            for k, it in enumerate(st.items):
                self.q.append((self.queued, it, k == len(st.items) - 1))
            self.queued += 1; n += 1
    def pump(self, n=1):
        while n > 0 and self.q:
            s, it, last = self.q.popleft()
            for x in it: self.em(x)
            if last: self.stages[s].tok = self.em.vm_tok()
            n -= 1
    def pump_all(self): self.pump(10**9)
    def barrier(self, publish=None, lg=False):
        if publish is not None:
            while self.stages[publish].tok is None:
                assert self.q, f'stage {publish} {self.stages[publish].name} never queued (released={self.released}, queued={self.queued})'
                self.pump(1)
            self.em.wait(vm=self.stages[publish].tok)
            for j in range(publish + 1): self.stages[j].published = True
        if lg: self.em.wait(lg=self.em.lg_tok())
        self.em('s_barrier')
        self.released = self.consumed
        self.refill()

def spread(gapfill, instrs, start, end):
    costs = [(x[1] if isinstance(x, tuple) else cost(x)) for x in instrs]
    tot = sum(costs); n = max(1, end - start)
    acc = 0
    for x, c in zip(instrs, costs):
        g = start + min(n - 1, int((acc + c / 2) * n / tot))
        gapfill[g].append(x[0] if isinstance(x, tuple) else x)
        acc += c

def run_stream(em, ring, mf, gapfill, frag_base, nfrag=12, group=4, ahead=8, fragk='a', pre=None, tail_fill=True, dma_min_gap=2, pre_first=False, dma_max_gap=2, dma_margin=20, dma_relax=4):
    n = len(mf)
    toks = [None] * n
    last_of_stage = {}
    first_of_stage = {}
    for i, m in enumerate(mf):
        if m.get('stage') is not None:
            last_of_stage[m['stage']] = i
            first_of_stage.setdefault(m['stage'], i)
    bar_at = sorted(first_of_stage.values())
    def frag(i): return frag_base + (i % nfrag) * 4
    def issue_reads(j):
        m = mf[j]
        s = m.get('stage')
        if s is not None and not ring.stages[s].published:
            ring.barrier(publish=s)
        if m.get('reads'):
            f = frag(j)
            for x in m['reads'](fragk, f): em(x)
        toks[j] = em.lg_tok()
    if pre and pre_first:
        k = max(0, len(pre) - 20)
        for x in pre[:k]:
            x() if callable(x) else em(x)
        pre = pre[k:]
    for j in range(min(ahead, n)):
        issue_reads(j)
    if pre:
        for x in pre:
            x() if callable(x) else em(x)
    since = 0
    for i, m in enumerate(mf):
        if i % group == 0:
            em.wait(lg=toks[min(i + group - 1, n - 1)])
        if m.get('prewait'): m['prewait']()
        a = m.get('a') or f'{fragk}[{frag(i)}:{frag(i)+3}]'
        b = m['b']; d = m['acc']
        c = '0' if m.get('first') else d
        if m.get('swap'): a, b = b, a
        em(f'v_mfma_f32_32x32x16_bf16 {d}, {a}, {b}, {c}')
        s = m.get('stage')
        if s is not None and last_of_stage[s] == i:
            ring.consumed = max(ring.consumed, s + 1)
        j = i + ahead
        if j < n: issue_reads(j)
        if ring.q:
            since += 1
            hs = ring.q[0][0]
            dl = first_of_stage.get(hs, n + 10**6) - ahead - i
            left = sum(1 for x in ring.q if x[0] == hs)
            urgent = dl - dma_margin < left * dma_max_gap
            only_salu = not any('buffer_load' in x for x in ring.q[0][1])
            nb = next((x - ahead for x in bar_at if x - ahead > i), n)
            relaxed = max(dma_max_gap, min(dma_relax, (nb - i) // len(ring.q)))
            if only_salu or since >= (1 if urgent else relaxed):
                ring.pump(1)
                if not only_salu: since = 0
        for x in gapfill.pop(i, []):
            x() if callable(x) else em(x)
    if tail_fill:
        for g in sorted(gapfill):
            for x in gapfill[g]:
                x() if callable(x) else em(x)
        gapfill.clear()
```

```python
from common import *
from common import _stamp_n, _lbl

vD = [2, 3, 4]
vE = [5, 6, 7]
vTR = [[8, 9, 10], [11, 12, 13]]
H0 = 0; FR = 160
IDA = 232
YACC = X0 + 96
SACC = ACC0
sPB = sA0
sMYF = sA1
sPS = 93
sJ = 96
sV = 72
sFLQ = 97

def _pv(ldw, i): return lambda l: (l >> 3)*ldw + 16*((l & 7) ^ ((l >> 3) & 2)) + i*(8*ldw - 1024)
def _tr(hs, t, w): return lambda l: (lane_fn(hs, 128, 64, 16, 8, B2=32)(l) ^ (32*t)) + 65536*w
def _ident(m):
    def f(l):
        i, hfk = l & 31, l >> 5
        r = (i & 3) + 4*(i >> 3); hf = (i >> 2) & 1
        return (0x3f80 << (16*(r & 1))) if (hf == hfk and (r >> 1) == m) else 0
    return f
def _wo(i):
    def f(w, l):
        rho = min(40*w + 8*i + (l >> 3), 143)
        hfk, idx = divmod(rho, 72)
        return (18*(idx // 9) + 9*hfk + idx % 9)*1152 + 16*((l & 7) ^ ((l >> 3) & 2))
    return f
TAB.lane[0] = [
    [_pv(9216, 0), _pv(9216, 1), _pv(9216, 2), _pv(1152, 0)], [_pv(1152, 1), _pv(1152, 2), _tr(4096, 0, 0), _tr(4096, 0, 1)],
    [_tr(4096, 0, 2), _tr(4096, 1, 0), _tr(4096, 1, 1), _tr(4096, 1, 2)],
    [_tr(9216, 0, 0), _tr(9216, 0, 1), _tr(9216, 0, 2), _tr(9216, 1, 0)],
    [_tr(9216, 1, 1), _tr(9216, 1, 2), lambda l: (l & 31)*1152 + 64*(l >> 5), lambda l: 4*min(l, 15)],
    [_ident(0), _ident(1), _ident(2), _ident(3)], [_ident(4), _ident(5), _ident(6), _ident(7)],
    [lambda l: (9 - (l + 1) if l < 9 else 9 - 3*(l - 9) if l < 12 else 0), lambda l: (15 if l < 12 else 0), lambda l: 0, lambda l: 0],
]
TAB.thr[0] = [[_wo(0), _wo(1), _wo(2), _wo(3)], [_wo(4), lambda w, l: 128*min(64*w + l, 215), lambda w, l: 0, lambda w, l: 0]]

def silu_ops(acc, hdst):
    ops = []
    T = TMP
    for g in range(4):
        t = T + 4 * (g % 2)
        for i in range(4): ops.append(f'v_exp_f32 v{t+i}, -v{acc+4*g+i}')
        for i in range(4): ops.append(f'v_add_f32 v{t+i}, 1.0, v{t+i}')
        for i in range(4): ops.append(f'v_rcp_f32 v{t+i}, v{t+i}')
        for i in range(4): ops.append(f'v_mul_f32 v{t+i}, v{acc+4*g+i}, v{t+i}')
        for i in range(2): ops.append(f'v_cvt_pk_bf16_f32 v{T+8+2*(g%2)+i}, v{t+2*i}, v{t+2*i+1}')
        for i in range(2): ops.append(f'v_accvgpr_write_b32 a{hdst+2*g+i}, v{T+8+2*(g%2)+i}')
    return ops

def group_scc(ops):
    out = []; i = 0
    while i < len(ops):
        if isinstance(ops[i], str) and ops[i].startswith('s_cmp'):
            out.append((ops[i] + '\n' + ops[i+1], 8)); i += 2
        else: out.append(ops[i]); i += 1
    return out

def ffn_path(e, xs):
    e(f's_mul_i32 s{sB1}, s{sMY}, 768')
    e(f's_mul_i32 s{sT1}, s{sWAVE}, {48*9216}')
    e(f's_add_u32 s{sB1}, s{sB1}, s{sT1}')
    e(f's_mul_i32 s{sLDSW}, s{sWAVE}, 6144')
    e(f's_mul_i32 s{sT0}, s{sROT}, {64*9216}')
    for k in range(3):
        e(f's_add_u32 s{80+k}, s{sB1}, s{sT0}')
        if k < 2:
            e(f's_add_u32 s{sT0}, s{sT0}, {192*9216}')
            e(f's_cmp_ge_u32 s{sT0}, {576*9216}')
            e(f's_cselect_b32 s{sT0}, 0, s{sT0}')
    ring = Ring(e)
    NS = 6
    def mk(idx, base, goff, ldw, regs, S, name):
        addr = (idx % NS) * 24576
        items = []
        for half in range(2):
            items.append([f's_add_u32 m0, s{sLDSW}, {addr + half*3072}', f's_add_u32 s{sSOFF}, s{base}, {goff + half*24*ldw}'])
            for i in range(3):
                items.append([f'buffer_load_dwordx4 v{regs[i]}, {srd(S)}, s{sSOFF} offen offset:{i*1024} lds'])
        return Stage(addr, 24576, items, name)
    g1 = {}; g2 = {}
    for p in range(6):
        for k in range(3):
            g1[p, k] = ring.add(mk(len(ring.stages), 80 + k, p*128, 9216, vD, S_W1, f'w1 p{p} k{k}'))
    order2 = [(0, 0), (1, 0), (0, 1), (1, 1)] + [(i, k) for i in range(2, 9) for k in range(2)]
    for (i, k) in order2:
        g2[i, k] = ring.add(mk(len(ring.stages), sQ + i, k*192*1152, 1152, vE, S_W2, f'w2 slot{i} k{k}'))
    ring.reserved = [(XA + 67584, XEND)]
    ring.maxahead = 4
    ring.barrier()
    stamp(e, 'barrier1')
    ring.pump(4)
    su = [f's_mul_i32 s{sB2}, s{sMY}, {384*1152}', f's_mul_i32 s{sT1}, s{sWAVE}, {48*1152}', f's_add_u32 s{sB2}, s{sB2}, s{sT1}',
          f's_add_u32 s{sT0}, s{sV}, 1', f's_sub_u32 s{sT1}, s{sV}, 9', f's_mul_i32 s{sT1}, s{sT1}, 3',
          f's_cmp_lt_u32 s{sV}, 9', f's_cselect_b32 s{sT0}, s{sT0}, s{sT1}', f's_lshl_b32 s{sT0}, s{sT0}, 7']
    for i in range(9):
        su += [f's_cmp_ge_u32 s{sT0}, {9*128}', f's_cselect_b32 s{sT0}, 0, s{sT0}', f's_add_u32 s{sQ+i}, s{sB2}, s{sT0}', f's_add_u32 s{sT0}, s{sT0}, 128']
    su += [f's_mul_i32 s{sPS}, s{sTILE}, {P_TILE}', f's_lshl_b32 s{sT1}, s{sWAVE}, 12', f's_add_u32 s{sPS}, s{sPS}, s{sT1}',
           f's_mul_i32 s{sT1}, s{sV}, {P_Q}', f's_add_u32 s{sPB}, s{sPS}, s{sT1}',
           f's_cmp_lt_u32 s{sV}, 9', f's_cselect_b32 s{sFLQ}, s{sFLG}, {OOB}',
           f's_lshl_b32 s{sT1}, s{sV}, 14', f's_add_u32 s{sPS}, s{sPS}, s{sT1}',
           f's_mul_i32 s{sT1}, s{sB2}, {P_Q // 128}', f's_sub_u32 s{sPS}, s{sPS}, s{sT1}']
    ln_finish(e, xs, ring)
    ring.reserved = []

    mf = []; gap = defaultdict(list)
    st_ = {}
    spread(gap, group_scc(su), 2, 60)
    for p in range(6):
        accs = [ACC0 + 32*(p % 2), ACC0 + 32*(p % 2) + 16]
        start = len(mf)
        for ks in range(36):
            kb, v = divmod(ks, 4)
            st = g1[p, kb // 3]
            off = ring.stages[st].addr + (kb % 3)*8192 + v*1024
            for tt in range(2):
                mf.append(dict(stage=st, reads=tr_reads(vTR[tt], off, 512), b=X(ks), acc=f'v[{accs[tt]}:{accs[tt]+15}]', first=(ks == 0)))
        end = len(mf)
        ops = silu_ops(accs[0], H0 + 16*p) + silu_ops(accs[1], H0 + 16*p + 8)
        spread(gap, ops, end + 1, end + (70 if p < 5 else 62))
        if p == 2 and C.w2touch:
            gap[start + 10] += [f's_and_b32 s{sT1}, s{sTILE}, 7', f's_mul_i32 s{sT1}, s{sT1}, {48*1152}', f's_mul_i32 s{sT2}, s{sMY}, {384*1152}',
                                f's_add_u32 s{sT2}, s{sT2}, s{sT1}', f'v_accvgpr_read_b32 v{TMP+27}, a149']
            gap[start + 12].append(f'buffer_load_dword v{TMP+28}, v{TMP+27}, {srd(S_W2)}, s{sT2} offen')
            gap[start + 40].append(f's_add_u32 s{sT2}, s{sT2}, {216*128}')
            gap[start + 41].append(f'buffer_load_dword v{TMP+28}, v{TMP+27}, {srd(S_W2)}, s{sT2} offen')
        if p == 3 and C.wotouch:
            gap[start + 10] += [f's_lshr_b32 s{sT2}, s2, 3', f's_mul_i32 s{sT2}, s{sT2}, {216*128}', f'v_accvgpr_read_b32 v{TMP+27}, a149']
            gap[start + 12].append(f'buffer_load_dword v{TMP+28}, v{TMP+27}, {srd(S_WO)}, s{sT2} offen')
        if p in (0, 5): gap[end - 1].append(lambda: stamp(e, 'gemm1 panel'))
    G2 = len(mf)

    def acc2(i):
        if i == 8: return [YACC, YACC + 16]
        b = X0 + 32*(i % 2); return [b, b + 16]
    def store_ops(accs, i):
        tb = X0 + 64 + 16*(i % 2)
        ops = [f's_mul_i32 s{sST}, s{sQ+i}, {P_Q // 128}', f's_add_u32 s{sST}, s{sST}, s{sPS}']
        for part in range(4):
            tt, u = divmod(part, 2)
            a = accs[tt] + 8*u; T = tb + 4*part
            for k in range(4): ops.append(f'v_cvt_pk_bf16_f32 v{T+k}, v{a+2*k}, v{a+2*k+1}')
            ops.append((f'buffer_store_dwordx4 v[{T}:{T+3}], v{vL16}, {srd(S_WS)}, s{sST} offen offset:{part*1024} sc1', 30))
        ops.append((lambda: st_.__setitem__(('st', i), e.vm_tok()), 0))
        return ops
    vFV, vZ, vPZ = TMP + 16, TMP + 17, TMP + 15
    def flag_ops(i):
        def f():
            e.wait(vm=st_['st', i])
            e(f'v_mov_b32 v{vFV}, {i+1}')
            e(f'buffer_store_dword v{vFV}, v{vZ}, {srd(S_WS)}, s{sMYF} offen sc1')
        return f
    rl = f'buffer_load_dword v{vPZ}, v{vZ}, {srd(S_DBG)}, s{sRDY} offen sc1'
    def rdy1():
        e(f'v_mov_b32 v{vZ}, 0')
        e(f's_lshl_b32 s{sRDY}, s{sTILE}, 4\ns_lshl_b32 s{sT1}, s{sWAVE}, 2\ns_add_u32 s{sRDY}, s{sRDY}, s{sT1}')
        e(rl); st_['zp'] = e.vm_tok()
    gap[G2 - 100].append(rdy1)
    gap[G2 - 30].append(lambda: poll_check(e, rl, vPZ, st_['zp'], 1, sT1))

    vW = [TMP+0, TMP+1, TMP+2, TMP+3, TMP+4]
    vTW = [[TMP+5, TMP+6, TMP+7], [TMP+8, TMP+9, TMP+10]]
    vXO, vL4, vNEED, vFL = TMP+11, TMP+12, TMP+13, TMP+14
    sLW5 = 98; sWOB = sB1; sOB = 73; sXO = 74
    wst = []
    def wo_stage(idx, g):
        addr = (idx % NS) * 24576
        items = []
        for i in range(5):
            it = [f's_add_u32 m0, s{sLW5}, {addr + 1024*i}']
            it.append(f's_add_u32 s{sSOFF}, s{sWOB}, {g*144*1152}' if i == 0 else 's_nop 0')
            it.append(f'buffer_load_dwordx4 v{vW[i]}, {srd(S_WO)}, s{sSOFF} offen lds')
            items.append(it)
        return Stage(addr, 20480, items, f'wo g{g}')
    for g in range(4): wst.append(ring.add(wo_stage(len(ring.stages), g)))
    fl = f'buffer_load_dword v{vFL}, v{vL4}, {srd(S_WS)}, s{sFLQ} offen sc1'
    def mask_check(tok, mask):
        n = _lbl[0]; _lbl[0] += 1
        e.wait(vm=tok)
        body = f'v_cmp_ge_u32 vcc, v{vFL}, v{vNEED}\ns_nop 1\ns_and_b32 s{sT0}, vcc_lo, {mask}\ns_cmp_eq_u32 s{sT0}, {mask}\ns_cbranch_scc0 L_sp{n}'
        e(body)
        e(f'L_ok{n}:')
        TAILCODE.append(f'L_sp{n}:\ns_sleep 1\n{fl}\ns_waitcnt vmcnt(0)\n{body}\ns_branch L_ok{n}')

    slot_start = {}
    for (i, k) in order2:
        st = g2[i, k]
        if k == 0: slot_start[i] = len(mf)
        for kk in range(12):
            kb, v = divmod(kk, 4)
            off = ring.stages[st].addr + kb*8192 + v*1024
            hb = H0 + 16*(3*k + kb) + 4*v
            for tt in range(2):
                a = acc2(i)[tt]
                mf.append(dict(stage=st, reads=tr_reads(vTR[tt], off, 512), b=f'a[{hb}:{hb+3}]', acc=f'v[{a}:{a+15}]', first=(k == 0 and kk == 0)))
        if k == 1:
            end = len(mf)
            if i < 8:
                sp = C.st_span if i < 7 else C.st_span7
                spread(gap, store_ops(acc2(i), i), end + 1, end + sp)
                if i >= C.flag_from: gap[end + (C.flag_at if i < 7 else C.flag_at7)].append(flag_ops(i))
            if C.slotstamps and i < 8: gap[end - 1].append(lambda i=i: stamp(e, f'slot{i}'))
    END2 = len(mf)
    w = TMP + 19
    ops = [f'v_accvgpr_read_b32 v{vW[i]}, a{144+i}' for i in range(5)] + [f'v_accvgpr_read_b32 v{TMP+5+i}, a{132+i}' for i in range(8)]
    ops += [f'v_accvgpr_read_b32 v{w}, a140', f'v_accvgpr_read_b32 v{w+2}, a141', f'v_add_u32 v{w}, s{sV}, v{w}',
            f'v_subrev_u32 v{w+1}, 9, v{w}', f'v_min_u32 v{w}, v{w}, v{w+1}', f'v_and_b32 v{w}, v{w}, v{w+2}', f'v_add_u32 v{vNEED}, 1, v{w}',
            f's_mul_i32 s{sLW5}, s{sWAVE}, 5120', f's_min_u32 s{sWOB}, s{sV}, 8', f's_lshl_b32 s{sWOB}, s{sWOB}, 7',
            f's_add_u32 s{sXO}, s{sWOB}, s{sXOFF}', f's_add_u32 s{sOB}, s{sXOFF}, {WS_O}']
    srcs = [('o', a_) for a_ in range(8)] + [('n', m) for m in range(3)]
    srcs.sort(key=lambda x: x[1] if x[0] == 'o' else 3*x[1] + 2)
    sreg = [64, 65, 66, 67, 68, 69, 70, 71, 75, 76, 77]
    nE = C.tail_early
    ops += ['s_mov_b32 s78, 0', 's_mov_b32 s79, 0xf000' if C.o_with_late else 's_mov_b32 s79, 0']
    for n, (kind, v) in enumerate(srcs):
        sj = sreg[n]
        if kind == 'o':
            o_ = [f's_add_u32 s{sj}, s{sV}, {8 - v}', f's_cmp_ge_u32 s{sj}, 9', f's_cselect_b32 s{sT0}, 9, 0', f's_sub_u32 s{sj}, s{sj}, s{sT0}']
        else:
            o_ = [f's_mul_i32 s{sj}, s{sV}, 86', f's_lshr_b32 s{sj}, s{sj}, 8', f's_add_u32 s{sj}, s{sj}, {3 - v}', f's_cmp_ge_u32 s{sj}, 3',
                  f's_cselect_b32 s{sT0}, -6, -9', f's_sub_u32 s{sj}, s{sj}, s{sT0}']
        o_ += [f's_bitset1_b32 s{78 if n < nE else 79}, s{sj}', f's_lshl_b32 s{sj}, s{sj}, 14', f's_add_u32 s{sj}, s{sj}, s{sPB}']
        ops.append(('\n'.join(o_), 4*len(o_)))
    spread(gap, ops, slot_start[2] + 24, slot_start[6] - 12)
    XR = 144
    for part in range(4):
        gap[slot_start[6] + 26 + 5*part].append(f'buffer_load_dwordx4 a[{XR+4*part}:{XR+4*part+3}], v{vXO}, {srd(S_X)}, s{sXO} offen offset:{16*part}')
    gap[END2 - C.poll_e].append(lambda: (e(fl), st_.__setitem__('p1', e.vm_tok())))
    pre = add_norm(gap, 2, TMP + 12, lead=C.ffn_lead, ring=ring)
    run_stream(e, ring, mf, gap, FR, pre=pre, pre_first=True)
    stamp(e, 'gemm2 done')
    e(f's_cmp_lt_u32 s{sV}, 9')
    e('s_cbranch_scc0 L_nonowner')
    sv = _stamp_n[0]
    bufs = [96, 112, 208, 128] + [H0 + 16*i for i in range(6)] + [None]
    def PBq(n, part):
        if bufs[n] is None: r = TMP + 16 + 4*part; return f'v[{r}:{r+3}]'
        r = bufs[n] + 4*part; return f'a[{r}:{r+3}]'
    pt = {}
    def pload(n):
        for part in range(4):
            e(f'buffer_load_dwordx4 {PBq(n, part)}, v{vL16}, {srd(S_WS)}, s{sreg[n]} offen offset:{part*1024} sc1')
        pt[n] = e.vm_tok()
    def ident(n):
        e.wait(vm=pt[n])
        for part in range(4):
            tt, u = divmod(part, 2)
            a = f'v[{YACC+16*tt}:{YACC+16*tt+15}]'
            e(f'v_mfma_f32_32x32x16_bf16 {a}, a[{IDA+4*u}:{IDA+4*u+3}], {PBq(n, part)}, {a}')
    oregs = [ACC0 + 32 + 4*i for i in range(8)] + [X0 + 128 + 4*i for i in range(4)] + [X0 + 4*i for i in range(24)]
    def OQ(ks): r = oregs[ks]; return f'v[{r}:{r+3}]'
    def oload(ks):
        if ks and ks % 4 == 0: e(f's_add_u32 s{sOB}, s{sOB}, 4096')
        e(f'buffer_load_dwordx4 {OQ(ks)}, v{vL16}, {srd(S_WS)}, s{sOB} offen offset:{1024*(ks % 4)} sc1')
        st_['o', ks] = e.vm_tok()
    ring.pump_all()
    mask_check(st_['p1'], 's78')
    stamp(e, 'early ready')
    for n in range(nE):
        pload(n)
        if n == nE - C.poll_l: e(fl); p2 = e.vm_tok()
        if n >= 3: ident(n - 3)
    mask_check(p2, 's79')
    stamp(e, 'late ready')
    for n in range(nE, 11): pload(n)
    if not C.o_with_late:
        e(fl); p3 = e.vm_tok()
    for n in range(max(0, nE - 3), nE): ident(n)
    if not C.o_with_late:
        mask_check(p3, 0xf000)
        stamp(e, 'o ready')
    NPRE = C.o_pre
    for ks in range(NPRE): oload(ks)
    for n in range(nE, 11): ident(n)
    GT = TMP + 16
    ep = []
    for i0 in range(0, 32, 4):
        for i in range(4): ep.append(f'v_exp_f32 v{GT+i}, -v{YACC+i0+i}')
        for i in range(4): ep.append(f'v_add_f32 v{GT+i}, 1.0, v{GT+i}')
        for i in range(4): ep.append(f'v_rcp_f32 v{GT+i}, v{GT+i}')
        for i in range(4): ep.append(f'v_mul_f32 v{YACC+i0+i}, {f32(LN2*LN2)}, v{YACC+i0+i}')
        for i in range(4): ep.append(f'v_mul_f32 v{YACC+i0+i}, v{YACC+i0+i}, v{GT+i}')
    mf = []; gap = defaultdict(list)
    for g_ in range(4):
        st = wst[g_]
        for s in range(9):
            ks = 9*g_ + s
            off = ring.stages[st].addr + 1024*s
            for tt in range(2):
                a = SACC + 16*tt
                d = dict(stage=st, reads=tr_reads(vTW[tt], off, 512), b=OQ(ks), acc=f'v[{a}:{a+15}]', first=(ks == 0))
                if tt == 0: d['prewait'] = (lambda ks=ks: e.wait(vm=st_['o', ks]))
                mf.append(d)
            if ks + NPRE < 36: gap[2*ks].append(lambda ks=ks: oload(ks + NPRE))
    spread(gap, ep, 0, 60)
    XF = ACC0 + 32
    xo = []
    for i in range(16):
        xo += [f'v_accvgpr_read_b32 v{GT+4+(i%2)}, a{XR+i}', f'v_lshlrev_b32 v{XF+2*i}, 16, v{GT+4+(i%2)}', f'v_and_b32 v{XF+2*i+1}, s{sMASK}, v{GT+4+(i%2)}']
    spread(gap, xo, 60, 72)
    run_stream(e, ring, mf, gap, FR)
    stamp(e, 'wo done')
    for part in range(4):
        y = YACC + 8*part; s = SACC + 8*part; xf = XF + 8*part; tt = X0 + 4*part
        for i in range(4): e(f'v_pk_fma_f32 v[{xf+2*i}:{xf+2*i+1}], v[{s+2*i}:{s+2*i+1}], v[{y+2*i}:{y+2*i+1}], v[{xf+2*i}:{xf+2*i+1}]')
        for i in range(4): e(f'v_cvt_pk_bf16_f32 v{tt+i}, v{xf+2*i}, v{xf+2*i+1}')
        e(f'buffer_store_dwordx4 v[{tt}:{tt+3}], v{vXO}, {srd(S_OUT)}, s{sXO} offen offset:{16*part}{" sc1" if C.out_sc1 else ""}')
    stamp(e, 'out issued')
    if C.stamps: e.wait_all()
    stamp_flush(e)
    e('s_endpgm')
    e('L_nonowner:')
    _stamp_n[0] = sv
    e('s_nop 15')
    for x in store_ops(acc2(8), 8):
        x = x[0] if isinstance(x, tuple) else x
        x() if callable(x) else e(x)
    e.wait_all()
    flag_ops(8)()
    if C.stamps: e.wait_all()
    stamp_flush(e)
    e('s_endpgm')
```

```python
import sys
sys.path.insert(0, 'gen2')
from common import *
import common, ffn, attn

C.wotouch = 1; C.qtouch = 1; C.out_sc1 = 0; C.rot_a = 1; C.rot_f = 1; C.slotstamps = 0; C.early_first = 0; C.vrot = 1; C.nb_pre = 3; C.pre_touch_pump = 0; C.w2touch = 1
C.st_span = 20; C.flag_at = 44; C.st_span7 = 10; C.flag_at7 = 34; C.flag_from = 5
C.tail_early = 9; C.poll_e = 24; C.poll_l = 2; C.o_with_late = 0; C.o_pre = 8
C.kslot = 1; C.kv_dma_gap = 2; C.attn_lead = 6; C.q_dma_gap = 2
C.p1_at = 1; C.rs_sig1 = 40; C.rs_poll1 = 66; C.rs_pd = 30; C.rs_ld = 40; C.rs_sum = 24; C.sig2_early = 0; C.poll2_at = 2

def early(e):
    pass

def kd(name, vgpr, accum, sgpr=102):
    return f'''.p2align 6
.amdhsa_kernel {name}
  .amdhsa_next_free_vgpr {vgpr}
  .amdhsa_next_free_sgpr {sgpr}
  .amdhsa_accum_offset {accum}
  .amdhsa_group_segment_fixed_size 0
  .amdhsa_kernarg_size 80
  .amdhsa_user_sgpr_count 2
  .amdhsa_user_sgpr_kernarg_segment_ptr 1
  .amdhsa_system_sgpr_workgroup_id_x 1
.end_amdhsa_kernel
'''

def build(path, verbose=False):
    e = Em()
    xs = prologue(e, early)
    e(f's_cmp_eq_u32 s{sROLE}, 3')
    e('s_cbranch_scc1 L_attn')
    sv = (e.vm_n, e.lg_n, e.vm_done, e.lg_done); sn = common._stamp_n[0]
    ffn.ffn_path(e, xs)
    e('L_attn:')
    e.vm_n, e.lg_n, e.vm_done, e.lg_done = sv; common._stamp_n[0] = sn
    e('s_nop 7')
    attn.attn_path(e, xs)
    for x in TAILCODE: e(x)
    e('L_end:')
    e('s_endpgm')
    n1 = e.fix_hazards(verbose)
    hdr = open(f'cdna_kernels/{NAME}.s.ref').read().split('\n')
    hdr = [l for l in hdr if l.startswith(';') and '@launch' not in l and 'Override' not in l and 'grid=ceil' not in l]
    out = '\n'.join(hdr) + '\n'
    out += '; cfg ' + ' '.join(a for a in sys.argv[1:] if a.startswith('--')) + '\n'
    out += f'; @launch grid=(256,1,1) block=(256,1,1) lds=163840\n'
    out += '.amdgcn_target "amdgcn-amd-amdhsa--gfx950"\n.text\n'
    nm = NAME + '_kernel'
    out += f'.globl {nm}\n.p2align 8\n.type {nm},@function\n{nm}:\n' + e.text() + TAB.text()
    out += '.section .rodata,"a"\n' + kd(nm, 512, 256)
    open(path, 'w').write(out)
    print(f'wrote {path}: {len(e.ins)} instrs, hazard pads {n1}')

if __name__ == '__main__':
    C.stamps = 1 if '-s' in sys.argv else 2 if '-l' in sys.argv else 0
    for a in sys.argv[1:]:
        if a.startswith('--'):
            k, v = a[2:].split('='); setattr(C, k, int(v))
    args = [a for a in sys.argv[1:] if not a.startswith('-')]
    build(args[0] if args else f'cdna_kernels/{NAME}.s', verbose='-v' in sys.argv)
```

```python
from common import *
from common import _stamp_n, _lbl

PHI = 81920; PHP = 592
VB = 0; VP = 400
MIMG = 126976
FL = 143360
def _kvoff(i):
    def f(l):
        L = 64*i + l; row, cc = divmod(L, 36)
        sc = 2*(cc >> 2) + (cc & 1)
        return row*3456 + 1152*(1 + (sc >= 9)) + 144*((cc >> 1) & 1) + 16*(sc % 9) - 1024*(i % 4)
    return f
def _qoff(i):
    def f(l):
        L = 64*i + l; row, cc = divmod(L, 20)
        sc = min(2*(cc >> 2) + (cc & 1), 8)
        return row*3456 + 144*((cc >> 1) & 1) + 16*sc - (1024*i if i < 4 else 0)
    return f
def _wdst(i):
    def f(w, l):
        idx = 64*w + l + 256*i
        if idx > 1295: return MIMG + 34560 + 4*l
        R = idx // 9
        return MIMG + 4*idx + 124*R + 36*((R // 18) & 3)
    return f
_tk = lane_fn(32*576, 576, 32, 16, 8)
TAB.lane[1] = [
    [_kvoff(0), _kvoff(1), _kvoff(2), _kvoff(3)], [_kvoff(4), _kvoff(5), _kvoff(6), _kvoff(7)],
    [_kvoff(8), _tk, lambda l: _tk(l) + 65536, lambda l: _tk(l) + 131072],
    [_qoff(0), _qoff(1), _qoff(2), _qoff(3)],
    [_qoff(4), lane_fn(32*320, 320, 32, 16, 8),
     lambda l: MIMG + lane_fn(0, 160, 0, 16, 8)(l) + (11520*(l >> 5) if (l & 1) == (l >> 5) else 23040),
     lambda l: PHI + (l & 31)*PHP + 288*(l >> 5)],
    [lane_fn(2*PHP, 4*PHP, 16, 32, 8, K=PHI), lane_fn(2*PHP, 4*PHP, 0, 0, 72, K=PHI + 64),
     lambda l: VB + lane_fn(2*VP, 4*VP, 0, 0, 0)(l) + 8*min(4*((l >> 4) & 1) + (l & 3), 5),
     lambda l: FL + 16384 + 8*l + 4*(l >> 5)],
    [lambda l: FL + 16*l, lambda l: (l & 15)*10240, lambda l: 16*(l & 15), lambda l: 0],
    [lambda l: VB + (l & 31)*VP + 192*(l >> 5), lambda l: (min(l, 53) // 3)*3456 + (0, 140, 284)[min(l, 53) % 3],
     lambda l: (16*(20*(l >> 5) + ((l & 31) if (l & 31) < 18 else (l & 31) - 2)) if ((l & 31) < 18 or (l & 31) in (20, 21)) else OOB), lambda l: 0],
]
def _f2(w, l):
    j = min(l, 9); p = 5*w + j // 2
    u = 5*(p // 2) + 2*(p & 1) + (j & 1) if p < 16 else 5*(2*(p - 16) + (j & 1)) + 4
    return (u & 15)*10240 + (u >> 4)*128
TAB.thr[1] = [[_wdst(0), _wdst(1), _wdst(2), _wdst(3)], [_wdst(4), _wdst(5), lambda w, l: MIMG + 1024*w + 16*l, lambda w, l: MIMG + min(1024*w + 16*l, 111*16)], [_f2, lambda w, l: 0, lambda w, l: 0, lambda w, l: 0]]

def attn_path(e, xs):
    sMYF = sA1
    sP1 = sA0
    vQ = [2, 3, 4, 5, 6]
    vK = list(range(2, 11))
    vT = [11, 12, 13]
    FR = 0; WPH = 48; KP = 132; VA = 168
    e(f's_mul_i32 s{sB1}, s{sWAVE}, {16*3456}')
    e(f's_mul_i32 s{sT0}, s{sSG}, 288')
    e(f's_add_u32 s{sB1}, s{sB1}, s{sT0}')
    e(f's_mul_i32 s{sLDSW}, s{sWAVE}, 9216')
    sLQ = 73
    e(f's_mul_i32 s{sT0}, s{sROT}, {64*3456}')
    for k in range(9):
        e(f's_add_u32 s{sQ+k}, s{sB1}, s{sT0}')
        if k < 8:
            e(f's_add_u32 s{sT0}, s{sT0}, {64*3456}')
            e(f's_cmp_ge_u32 s{sT0}, {576*3456}')
            e(f's_cselect_b32 s{sT0}, 0, s{sT0}')
    ring = Ring(e)
    def kv_stage(addr, kb):
        items = []
        for i in range(9):
            it = []
            if i % 4 == 0:
                it.append(f's_add_u32 m0, s{sLDSW}, {addr + 1024*i}')
                it.append('s_nop 0')
            it.append(f'buffer_load_dwordx4 v{vK[i]}, {srd(S_WQKV)}, s{sQ+kb} offen offset:{1024*(i % 4)} lds')
            items.append(it)
        return Stage(addr, 36864, items, f'kv kb{kb}')
    def q_stage(addr, kb):
        items = []
        for i in range(5):
            it = []
            if i % 4 == 0:
                it.append(f's_add_u32 m0, s{sLQ}, {addr + 1024*i}')
                it.append('s_nop 0')
            it.append(f'buffer_load_dwordx4 v{vQ[i]}, {srd(S_WQKV)}, s{sQ+kb} offen offset:{1024*(i % 4)} lds')
            items.append(it)
        return Stage(addr, 20480, items, f'q kb{kb}')
    kslot = [0, 1, 2, 0, 1, 3, 2, 0, 1] if C.kslot else [0, 1, 2, 0, 1, 2, 3, 0, 1]
    kst = [ring.add(kv_stage(kslot[kb] * 36864, kb)) for kb in range(9)]
    qslots = [61440, 81920, 102400, 122880, 0, 20480, 40960]
    qst = []
    ring.reserved = [(XA + 67584, XEND)]
    ring.maxahead = 5
    ring.barrier()
    stamp(e, 'barrier1')
    ring.pump(3)
    ln_finish(e, xs, ring, maxpump=C.a_maxpump)
    ring.reserved = [(MIMG, 163840)]
    st_ = {}
    gap = defaultdict(list)
    pre = add_norm(gap, 9, TMP + 16, lead=C.attn_lead, ring=ring)
    W = TMP + 24
    def wld():
        e(f's_mul_i32 s{sT0}, s{sSG}, {8*648}')
        e(f's_add_u32 s{sT1}, s{sT0}, 4096')
        e(f'v_lshlrev_b32 v15, 2, v0')
        for i in range(6):
            e(f'buffer_load_dword a{240+i}, v15, {srd(S_WPHI)}, s{sT0 if i < 4 else sT1} offen offset:{1024*(i % 4)}')
        st_['wl'] = e.vm_tok()
    gap[C.wl_at].append(wld)
    z = [f'v_mov_b32 v{W+i}, 0' for i in range(4)] + [f'v_accvgpr_read_b32 v{W+4}, a150', f'v_accvgpr_read_b32 v{W+5}, a151']
    for i in range(9): z.append(f'ds_write_b128 v{W+4 if i < 8 else W+5}, v[{W}:{W+3}] offset:{4096*i}')
    spread(gap, z, 0, 12)
    sc = [(lambda: e.wait(vm=st_['wl']), 4)]
    for i in range(6):
        sc += [f'v_accvgpr_read_b32 v{W+(i%2)}, a{144+i}', f'ds_write_b32 v{W+(i%2)}, a{240+i}']
    vM = W + 3
    sc.append(f'v_accvgpr_read_b32 v{vM}, a138')
    spread(gap, sc, 44, 54)
    pairs = [(T, s) for T, ss in enumerate([range(0, 3), range(0, 5), range(2, 7), range(4, 9), range(6, 9)]) for s in ss]
    rdw = []
    for n, (T, s) in enumerate(pairs):
        for rd in range(2):
            rdw.append(f'ds_read_b64_tr_b16 a[{WPH+4*n+2*rd}:{WPH+4*n+2*rd+1}], v{vM} offset:{(8*s+4*rd)*160 + 32*T}')
    for i, x in enumerate(rdw): gap[66 + i].insert(0, x)
    def rel(): ring.reserved = []
    gap[124].append(rel)
    rl = f'buffer_load_dword v{W+1}, v{W}, {srd(S_DBG)}, 0 offen sc1'
    def rdy1():
        e(f'v_accvgpr_read_b32 v{W}, a238')
        e('s_nop 0')
        e(rl); st_['zp'] = e.vm_tok()
    if C.qtouch:
        gap[218] += [f's_and_b32 s{sT0}, s{sTILE}, 7', f's_lshl_b32 s{sT0}, s{sT0}, 2', f's_add_u32 s{sT0}, s{sT0}, s{sWAVE}', f's_mul_i32 s{sT0}, s{sT0}, {18*3456}',
                     f's_mul_i32 s{sT1}, s{sSG}, 288', f's_add_u32 s{sT0}, s{sT0}, s{sT1}', f'v_accvgpr_read_b32 v{W+4}, a141', 's_nop 0',
                     f'buffer_load_dword v{W+5}, v{W+4}, {srd(S_WQKV)}, s{sT0} offen']
    gap[170].append(rdy1)
    gap[240].append(lambda: poll_check_all(e, rl, W+1, st_['zp'], sT1))
    vPW, vVW, vONE = 7, 8, 9
    qo = [f'v_accvgpr_read_b32 v{vQ[i]}, a{132+i}' for i in range(5)]
    qo += [f'v_accvgpr_read_b32 v10, a142']
    qo += [f'v_accvgpr_read_b32 v{W}, a152', f'v_accvgpr_write_b32 a239, v{W}']
    qo += [f'v_accvgpr_read_b32 v{vPW}, a139', f'v_accvgpr_read_b32 v{vVW}, a140', f'v_accvgpr_read_b32 v15, a137',
           (f's_mul_i32 s{sT0}, s{sWAVE}, {32*PHP}\nv_add_u32 v{vPW}, s{sT0}, v{vPW}', 8),
           (f's_mul_i32 s{sT0}, s{sWAVE}, {32*VP}\nv_add_u32 v{vVW}, s{sT0}, v{vVW}', 8), f'v_mov_b32 v{vONE}, 1.0',
           f's_mul_i32 s{sLQ}, s{sWAVE}, 5120', f's_mul_i32 s{sP1}, s{sSG}, {40*16384}', f's_add_u32 s{sP1}, s{sP1}, {WS_P1}']
    spread(gap, qo, 290, 320)
    mf = []
    for ks in range(36):
        kb, v = divmod(ks, 4)
        st = kst[kb]
        for T in range(9):
            off = ring.stages[st].addr + 8*v*576 + 64*T
            acc = f'v[{ACC0+16*T}:{ACC0+16*T+15}]' if T < 5 else f'a[{VA+16*(T-5)}:{VA+16*(T-5)+15}]'
            mf.append(dict(stage=st, reads=tr_reads(vT, off, 4*576), b=X(ks), acc=acc, first=(ks == 0)))
    if C.slotstamps:
        for g_ in (): gap[g_].append(lambda g_=g_: stamp(e, f'kv gap {g_}'))
    run_stream(e, ring, mf, gap, FR, pre=pre, pre_first=True, dma_max_gap=C.kv_dma_gap)
    stamp(e, 'KV gemm')
    e(f'v_mov_b32 v{vT[0]}, v15')
    e(f'v_add_u32 v{vT[1]}, 65536, v15')
    e(f'v_add_u32 v{vT[2]}, 131072, v15')
    for kb in range(9): qst.append(ring.add(q_stage(qslots[kb % 7], kb)))

    def pack_proj(fill=()):
        fill = list(fill)
        for i in range(36):
            e(f'v_cvt_pk_bf16_f32 v{TMP+16+(i%4)}, v{ACC0+2*i}, v{ACC0+2*i+1}')
            e(f'v_accvgpr_write_b32 a{KP+i}, v{TMP+16+(i%4)}')
            if i % 6 == 5: ring.pump(1)
        seen = set()
        for n, (T, s) in enumerate(pairs):
            d = f'v[{ACC0+16*T}:{ACC0+16*T+15}]'
            e(f'v_mfma_f32_32x32x16_bf16 {d}, a[{WPH+4*n}:{WPH+4*n+3}], a[{KP+4*s}:{KP+4*s+3}], {d if T in seen else 0}')
            seen.add(T)
            for _ in range(5):
                if fill:
                    x = fill.pop(0); x() if callable(x) else e(x)
        for x in fill: x() if callable(x) else e(x)

    def softmax_ops(a, T1, S):
        p = ACC0 + 18*a
        ops = []
        mx, mn = S, S+2
        ops.append(f'v_max3_f32 v{mx}, v{p}, v{p+1}, v{p+2}')
        ops.append(f'v_min3_f32 v{mn}, v{p}, v{p+1}, v{p+2}')
        for i in range(3, 17, 2):
            ops.append(f'v_max3_f32 v{mx}, v{mx}, v{p+i}, v{p+i+1}')
            ops.append(f'v_min3_f32 v{mn}, v{mn}, v{p+i}, v{p+i+1}')
        ops.append(f'v_max_f32 v{mx}, v{mx}, v{p+17}')
        ops.append(f'v_min_f32 v{mn}, v{mn}, v{p+17}')
        for i in range(0, 18, 2):
            ops.append(f'v_pk_add_f32 v[{T1+i}:{T1+i+1}], v[{p+i}:{p+i+1}], v[{mx}:{mx+1}] op_sel_hi:[1,0] neg_lo:[0,1] neg_hi:[0,1]')
            ops.append(f'v_pk_add_f32 v[{p+i}:{p+i+1}], v[{p+i}:{p+i+1}], v[{mn}:{mn+1}] op_sel_hi:[1,0] neg_lo:[1,0] neg_hi:[1,0]')
        for i in range(18):
            ops.append(f'v_exp_f32 v{T1+i}, v{T1+i}')
            ops.append(f'v_exp_f32 v{p+i}, v{p+i}')
        ops.append(f'v_pk_add_f32 v[{mx}:{mx+1}], v[{T1}:{T1+1}], v[{T1+2}:{T1+3}]')
        ops.append(f'v_pk_add_f32 v[{mn}:{mn+1}], v[{p}:{p+1}], v[{p+2}:{p+3}]')
        for i in range(4, 18, 2):
            ops.append(f'v_pk_add_f32 v[{mx}:{mx+1}], v[{mx}:{mx+1}], v[{T1+i}:{T1+i+1}]')
            ops.append(f'v_pk_add_f32 v[{mn}:{mn+1}], v[{mn}:{mn+1}], v[{p+i}:{p+i+1}]')
        ops.append(f'v_add_f32 v{mx}, v{mx}, v{mx+1}')
        ops.append(f'v_add_f32 v{mn}, v{mn}, v{mn+1}')
        ops.append(f'v_rcp_f32 v{mx}, v{mx}')
        ops.append(f'v_rcp_f32 v{mn}, v{mn}')
        ops.append('s_nop 0')
        for i in range(0, 18, 2):
            ops.append(f'v_pk_mul_f32 v[{T1+i}:{T1+i+1}], v[{T1+i}:{T1+i+1}], v[{mx}:{mx+1}] op_sel_hi:[1,0]')
            ops.append(f'v_pk_mul_f32 v[{p+i}:{p+i+1}], v[{p+i}:{p+i+1}], v[{mn}:{mn+1}] op_sel_hi:[1,0]')
        return ops, p

    T1 = ACC0 + 72; S = ACC0 + 90
    for i in range(8): e(f'v_accvgpr_write_b32 a{244+i}, v{ACC0+72+i}')
    def va(idx): return 244 + idx if idx < 8 else VA + idx - 8
    ring.reserved = [(PHI, 163840), (VB, VB + 128*VP)]
    ring.barrier()
    vw = []
    B = TMP + 20
    for a in range(4):
        prs = [(0,1),(2,3),(9,10),(11,12),(4,5),(6,7),(13,14),(15,16),(8,None),None,(17,None),None]
        for m, pr in enumerate(prs):
            d = B + m
            if pr is None:
                if a == 0: vw.append(f'v_mov_b32 v{d}, 0')
            else:
                r0 = TMP + 16 + (2*m) % 4
                vw.append(f'v_accvgpr_read_b32 v{r0}, a{va(18*a+pr[0])}')
                if pr[1] is not None: vw.append(f'v_accvgpr_read_b32 v{r0+1}, a{va(18*a+pr[1])}')
                vw.append(f'v_cvt_pk_bf16_f32 v{d}, v{r0}, v{r0+1 if pr[1] is not None else vONE}')
        for i in range(3): vw.append(f'ds_write_b128 v{vVW}, v[{B+4*i}:{B+4*i+3}] offset:{48*a + 16*i}')
    pack_proj(vw)
    stamp(e, 'proj k + v')
    for a in range(4):
        o, p = softmax_ops(a, T1, S)
        for x in o: e(x)
        for m in range(9): e(f'v_cvt_pk_bf16_f32 v{p+m}, v{p+2*m}, v{p+2*m+1}')
        for m in range(9): e(f'v_cvt_pk_bf16_f32 v{p+9+m}, v{T1+2*m}, v{T1+2*m+1}')
        if a % 2 == 1:
            q0 = p - 18
            for i in range(9): e(f'ds_write_b128 v{vPW}, v[{q0+4*i}:{q0+4*i+3}] offset:{72*(a-1) + 16*i}')
    stamp(e, 'softmax k')
    vA0, vA1, vL0, vL1, vB0 = TMP+16, TMP+17, TMP+18, TMP+19, TMP+20
    e(f's_mul_i32 s{sT0}, s{sWAVE}, 144')
    e(f's_mul_i32 s{sT1}, s{sWAVE}, 96')
    e(f'v_accvgpr_read_b32 v{vA0}, a232\nv_accvgpr_read_b32 v{vL0}, a233\nv_accvgpr_read_b32 v{vB0}, a234')
    e(f'v_add_u32 v{vA0}, s{sT0}, v{vA0}\nv_add_u32 v{vL0}, s{sT0}, v{vL0}\nv_add_u32 v{vB0}, s{sT1}, v{vB0}')
    e(f'v_add_u32 v{vA1}, {64*PHP}, v{vA0}\nv_add_u32 v{vL1}, {64*PHP}, v{vL0}')
    ring.barrier(lg=True)
    stamp(e, 'phi visible')
    OPB = [0, 20, 208]
    KVD = [[132, 168], [148, 184]]
    toks = {}
    def kv_reads(s):
        o = OPB[s % 3]
        hi = s >= 4
        for rd in range(2):
            for h in range(2):
                e(f'ds_read_b64_tr_b16 a[{o+4*h+2*rd}:{o+4*h+2*rd+1}], v{vB0} offset:{(16*s+rd)*VP + 48*h}')
                e(f'ds_read_b64_tr_b16 a[{o+8+4*h+2*rd}:{o+8+4*h+2*rd+1}], v{vA1 if hi else vA0} offset:{(16*(s%4)+rd)*PHP + 72*h}')
            e(f'ds_read_b64_tr_b16 a[{o+16+2*rd}:{o+16+2*rd+1}], v{vL1 if hi else vL0} offset:{(16*(s%4)+rd)*PHP}')
        toks[s] = e.lg_tok()
    kv_reads(0); kv_reads(1)
    for s in range(8):
        e.wait(lg=toks[s])
        if s == 7:
            ring.reserved = []
            ring.barrier()
        o = OPB[s % 3]
        for h in range(2):
            for part in range(2):
                d = KVD[h][part]
                a = o + 8 + 4*h if part == 0 else o + 16
                e(f'v_mfma_f32_32x32x16_bf16 a[{d}:{d+15}], a[{a}:{a+3}], a[{o+4*h}:{o+4*h+3}], {0 if s == 0 else f"a[{d}:{d+15}]"}')
                if s == 7: ring.pump(1)
            if h == 0 and s + 2 < 8: kv_reads(s + 2)
    stamp(e, 'kv mfma')

    gap = defaultdict(list)
    w = TMP + 16
    vZ, vPL, vL4, vFS = w + 2, w + 3, w + 1, w + 12
    RBq = [132 + 4*i for i in range(8)] + [168 + 4*i for i in range(8)]
    RS = w + 4
    vM16 = 10
    sC1, sC2, sU, sPS = 95, 96, 97, 74
    gap[0] += [f's_mul_i32 s{sPS}, s{sWAVE}, {10*16384}', f's_add_u32 s{sPS}, s{sPS}, s{sP1}', f's_lshl_b32 s{sT1}, s{sTILE}, 10', f's_add_u32 s{sPS}, s{sPS}, s{sT1}']
    gap[1] += [f'v_mov_b32 v{vZ}, 0', f'v_mov_b32 v{w}, 1', f'v_accvgpr_read_b32 v{vL4}, a237', f's_lshl_b32 s{sC1}, s{sSG}, 9', f's_add_u32 s{sC1}, s{sC1}, {WS_FLG + 8192}']
    gap[2] += [f's_mul_i32 s{sC2}, s{sTILE}, 10240', f's_add_u32 s{sC2}, s{sC2}, s{sC1}', f's_lshl_b32 s{sT0}, s{sWAVE}, 7', f's_add_u32 s{sC2}, s{sC2}, s{sT0}']
    gap[3] += [f's_lshl_b32 s{sU}, s{sWAVE}, 4', f's_add_u32 s{sU}, s{sU}, s{sTILE}', f's_min_u32 s{sT0}, s{sU}, 39', f's_mul_i32 s{sT0}, s{sT0}, 26', f's_lshr_b32 s{sT0}, s{sT0}, 8',
               f's_lshl_b32 s{sT0}, s{sT0}, 7', f's_add_u32 s75, s{sC1}, s{sT0}']
    g_ = C.p1_at
    for h in range(2):
        for k in range(5):
            r = KVD[h][0] + 4*k if k < 4 else KVD[h][1] + 4*h
            gap[g_].append(f'buffer_store_dwordx4 a[{r}:{r+3}], v{vM16}, {srd(S_WS)}, s{sPS} offen sc1\ns_add_u32 s{sPS}, s{sPS}, 16384')
            g_ += 1
    gap[g_ - 1].append(lambda: st_.__setitem__('p1', e.vm_tok()))
    def sig1():
        e.wait(vm=st_['p1'])
        e(f'buffer_store_dword v{w}, v{vZ}, {srd(S_WS)}, s{sC2} offen sc1')
    gap[C.rs_sig1].append(sig1)
    ld1 = f'buffer_load_dword v{vPL}, v{vL4}, {srd(S_WS)}, s75 offen sc1'
    def pl1(): e(ld1); st_['p'] = e.vm_tok()
    gap[C.rs_poll1].append(pl1)
    def chk1():
        poll_check_all(e, ld1, vPL, st_['p'], sT1)
        e(f's_lshl_b32 s{sT3}, s{sU}, 14')
        e(f's_add_u32 s{sT3}, s{sT3}, s{sP1}')
        e(f's_cmp_lt_u32 s{sU}, 40')
        e(f's_cselect_b32 s{sT3}, s{sT3}, {OOB}')
    c1 = C.rs_poll1 + C.rs_pd
    gap[c1].append(chk1)
    for i in range(16):
        gg = c1 + 1 + i // 2
        if i and i % 4 == 0: gap[gg].append(f's_add_u32 s{sT3}, s{sT3}, 4096')
        gap[gg].append(f'buffer_load_dwordx4 a[{RBq[i]}:{RBq[i]+3}], v{vM16}, {srd(S_WS)}, s{sT3} offen offset:{1024*(i%4)} sc1')
        gap[gg].append(lambda i=i: st_.__setitem__(('r', i), e.vm_tok()))
    fa = [f's_mul_i32 s{sT0}, s{sU}, 52', f's_lshr_b32 s{sT0}, s{sT0}, 8', f's_mul_i32 s{sT1}, s{sT0}, 5', f's_sub_u32 s{sT1}, s{sU}, s{sT1}',
          f's_lshl_b32 s{sPS}, s{sT0}, 11', f's_lshr_b32 s{sT2}, s{sT1}, 1', f's_lshl_b32 s{sT2}, s{sT2}, 10', f's_add_u32 s{sPS}, s{sPS}, s{sT2}',
          f's_and_b32 s{sT2}, s{sT1}, 1', f's_lshl_b32 s{sT2}, s{sT2}, 3', f's_add_u32 s{sPS}, s{sPS}, s{sT2}',
          f's_lshl_b32 s{sT0}, s{sT0}, 9', f's_add_u32 s{sT0}, s{sT0}, 16384',
          f's_cmp_eq_u32 s{sT1}, 4', f's_cselect_b32 s{sPS}, s{sT0}, s{sPS}', f's_cselect_b32 s{sT1}, 3, 4',
          f'v_lshlrev_b32 v{vFS}, s{sT1}, v{vLANE}',
          f's_mul_i32 s{sB2}, s{sSG}, 20480', f's_add_u32 s{sB2}, s{sB2}, {WS_F}', f's_add_u32 s{sPS}, s{sPS}, s{sB2}', f's_cmp_lt_u32 s{sU}, 40', f's_cselect_b32 s{sPS}, s{sPS}, {OOB}']
    gap[c1 + 12].append('\n'.join(fa))
    sm = []
    for i in range(16):
        if i % 4 == 0: sm.append((lambda i=i: e.wait(vm=st_['r', i + 3]), 4))
        for k in range(4):
            sm.append(f'v_accvgpr_read_b32 v{RS + (k if i == 0 else 4 + k)}, a{RBq[i]+k}')
        if i:
            for k in range(4): sm.append(f'v_add_f32 v{RS+k}, v{RS+k}, v{RS+4+k}')
    sm += [f'v_cvt_pk_bf16_f32 v{RS+4}, v{RS}, v{RS+1}', f'v_cvt_pk_bf16_f32 v{RS+5}, v{RS+2}, v{RS+3}',
           f'buffer_store_dwordx2 v[{RS+4}:{RS+5}], v{vFS}, {srd(S_WS)}, s{sPS} offen sc1',
           (lambda: st_.__setitem__('f', e.vm_tok()), 0)]
    s0 = c1 + C.rs_ld
    spread(gap, sm, s0, s0 + C.rs_sum)
    def sig2():
        e.wait(vm=st_['f'])
        e(f'buffer_store_dword v6, v7, {srd(S_WS)}, s{sC2} offen offset:64 sc1')
    g2_ = s0 + C.rs_sum + C.rs_sig2
    instream2 = g2_ < 179
    if instream2:
        gap[g2_].append(lambda: (e.wait(vm=st_['f']), e(f'buffer_store_dword v{w}, v{vZ}, {srd(S_WS)}, s{sC2} offen offset:64 sc1')))
    mfq = []
    for ks in range(36):
        kb, v = divmod(ks, 4)
        st = qst[kb]
        for T in range(5):
            off = ring.stages[st].addr + 8*v*320 + 64*T
            a = ACC0 + 16*T
            mfq.append(dict(stage=st, reads=tr_reads(vT, off, 4*320), b=X(ks), acc=f'v[{a}:{a+15}]', first=(ks == 0)))
    if C.slotstamps:
        for g_ in (11, C.rs_sig1 - 1, C.rs_sig1 + 1, c1 - 1, c1 + 1, s0 - 1, s0 + C.rs_sum): gap[g_].append(lambda g_=g_: stamp(e, f'q gap {g_}'))
    run_stream(e, ring, mfq, gap, FR, dma_max_gap=C.q_dma_gap)
    stamp(e, 'Q gemm')
    e(f'v_mov_b32 v6, 1\nv_mov_b32 v7, 0\nv_accvgpr_read_b32 v2, a239')
    KA = 168
    def KAf(h): return 168 + 12*h if h < 5 else 0 + 12*(h - 5)
    zf = []
    for h in range(8):
        for i in range(4):
            if i != h % 4: zf.append(f'v_accvgpr_write_b32 a{KAf(h)+8+i}, 0')
    zf += [f'v_accvgpr_read_b32 v3, a235', f'v_accvgpr_read_b32 v5, a236', f's_mul_i32 s{sT0}, s{sWAVE}, 5120', f's_add_u32 s{sB2}, s{sB2}, s{sT0}']
    if C.sig2_early and not instream2: sig2()
    ld2 = f'buffer_load_dword v4, v2, {srd(S_WS)}, s{sC1} offen offset:64 sc1'
    if C.poll2_at == -1: e('s_nop 0'); e(ld2); pt = e.vm_tok()
    pack_proj(zf)
    if not C.sig2_early and not instream2: sig2()
    stamp(e, 'proj q')
    PQ = X0; L0 = X0 + 64; L1 = X0 + 68
    KF = X0 + 72
    vPOLL = 4
    def sm_q(a):
        o, p = softmax_ops(a, T1, S)
        for x in o: e(x)
        def dst(m): return PQ + 16*a + m if m < 16 else (L0 + a if m == 16 else L1 + a)
        for m in range(9): e(f'v_cvt_pk_bf16_f32 v{dst(m)}, v{p+2*m}, v{p+2*m+1}')
        for m in range(9): e(f'v_cvt_pk_bf16_f32 v{dst(9+m)}, v{T1+2*m}, v{T1+2*m+1}')
        for m in (0, 1, 2, 3, 8, 9, 10, 11): e(f'v_permlane32_swap_b32 v{PQ+16*a+m}, v{PQ+16*a+m+4}')
        e(f'v_permlane32_swap_b32 v{L0+a}, v{L1+a}')
    ld2 = f'buffer_load_dword v{vPOLL}, v2, {srd(S_WS)}, s{sC1} offen offset:64 sc1'
    for a in range(4):
        if a == C.poll2_at: e(ld2); pt = e.vm_tok()
        if a == C.poll2_at + 1:
            poll_check_all(e, ld2, vPOLL, pt, sT1)
            stamp(e, 'kv ready')
            for i in range(5):
                e(f's_add_u32 m0, s{sLQ}, {FL + (4096 if i == 4 else 0)}')
                e(f's_add_u32 s{sB2}, s{sB2}, 4096' if i == 4 else 's_nop 0')
                e(f'buffer_load_dwordx4 v{vL16}, {srd(S_WS)}, s{sB2} offen offset:{1024*(i % 4)} sc1 lds')
            ft = e.vm_tok()
        sm_q(a)
    stamp(e, 'softmax q')
    e.wait(vm=ft)
    e('s_barrier')
    kt = {}
    for h in range(8):
        for u in range(2):
            e(f'ds_read_b128 a[{KAf(h)+4*u}:{KAf(h)+4*u+3}], v5 offset:{2048*h + 1024*u}')
        e(f'ds_read_b32 a{KAf(h)+8+(h%4)}, v3 offset:{512*h}')
        kt[h] = e.lg_tok()
    def OD(h): return ACC0 + 16*h if h < 5 else KF + 16*(h - 5)
    e(f's_mul_i32 s{sT0}, s{sSG}, 9216')
    e(f's_add_u32 s{sT0}, s{sT0}, s{sXOFF}')
    e(f's_add_u32 s{sT0}, s{sT0}, {WS_O}')
    OP_ = KF + 48
    def opq(s): return OP_ + 4*s if s < 6 else TMP + 16 + 4*(s - 6)
    def oreg(idx): return OD(idx // 9) + idx % 9
    post = []
    done = [0]
    def finish_ops(h):
        d = OD(h)
        ops = [f'v_add_f32 v{d+10}, {f32(1e-6)}, v{d+9}', f'v_rcp_f32 v{d+10}, v{d+10}', 's_nop 0']
        ops += [f'v_mul_f32 v{d+i}, v{d+i}, v{d+10}' for i in range(9)]
        while 8*(done[0] + 1) <= 9*(h + 1):
            s = done[0]
            for i in range(4): ops.append(f'v_cvt_pk_bf16_f32 v{opq(s)+i}, v{oreg(8*s+2*i)}, v{oreg(8*s+2*i+1)}')
            if s and s % 4 == 0: ops.append(f's_add_u32 s{sT0}, s{sT0}, 4096')
            ops.append(f'buffer_store_dwordx4 v[{opq(s)}:{opq(s)+3}], v{vL16}, {srd(S_WS)}, s{sT0} offen offset:{1024*(s%4)} sc1')
            done[0] += 1
        return ops
    for h in range(8):
        e.wait(lg=kt[h])
        a, up = h % 4, h // 4
        d = f'v[{OD(h)}:{OD(h)+15}]'
        for step in range(3):
            b = PQ + 16*a + 8*step + 4*up if step < 2 else (L1 if up else L0)
            af = KAf(h) + 4*step
            e(f'v_mfma_f32_32x32x16_bf16 {d}, a[{af}:{af+3}], v[{b}:{b+3}], {0 if step == 0 else d}')
            for _ in range(6):
                if post: e(post.pop(0))
        if h >= 1: post += finish_ops(h - 1)
    post += finish_ops(7)
    for x in post: e(x)
    assert done[0] == 9
    stamp(e, 'o issued')
    e.wait_all()
    e(f'buffer_store_dword v6, v7, {srd(S_WS)}, s{sMYF} offen sc1')
    stamp_flush(e)
    e('s_endpgm')
```

```python
import sys, struct
from asmlib import *
from engine import *
from collections import defaultdict

NAME = 'recurrent_scan__linear_kernel_hedgehog__dense_activation_silu__prompt'
LOG2E = 1.4426950408889634
LN2 = 0.6931471805599453
def f32(x): return '0x%08x' % struct.unpack('<I', struct.pack('<f', x))[0]

class Cfg:
    stamps = False
    code_touch = True
    ffn_lead = 30
    attn_lead = 28
C = Cfg()

WS_P = 0
P_Q = 12 * 16384; P_TILE = 9 * P_Q
WS_O = 16 * P_TILE
WS_P1 = WS_O + 64 * 36864
WS_F = WS_P1 + 4 * 40 * 16384
WS_FLG = WS_F + 4 * 24 * 1024
WS_DBG = WS_FLG + 16 * 10240
WS_SIZE = 268435456
WS_USED = WS_DBG + (1 << 20)
OOB = 0x40000000

S_X, S_W1, S_W2, S_WS, S_WQKV, S_WPHI, S_WO, S_DBG, S_OUT = 8, 12, 16, 20, 24, 28, 32, 36, 4
sWAVE, sTILE, sROLE, sSG = 40, 41, 42, 43
sXOFF = 44
sONES, sMASK = 45, 46
sLDSW = 47
sB1, sB2 = 48, 49
sT0, sT1, sT2, sT3 = 50, 51, 52, 53
sSOFF = 54
sFLG = 55
sST = 56
sA0, sA1 = 57, 62
sPC = 60
sMY = 63
sRDY = 99
sROT = 3
sQ = 84
def srd(b): return f's[{b}:{b+3}]'

vLANE = 1
vL16 = 14
X0 = 16
ACC0 = 160
TMP = 224
def X(ks): return f'v[{X0+4*ks}:{X0+4*ks+3}]'

XA = 6144
XC = XA + 2*67584
XEND = XC + 16384
XAD = ACC0
LNS = ACC0 + 8
LNC = TMP + 30

_stamp_n = [0]
def stamp(e, name=''):
    if not C.stamps or (C.stamps == 2 and name not in ('start', 'end')): return
    i = _stamp_n[0]; _stamp_n[0] += 1
    assert i < 32
    e('s_memtime s[58:59]')
    e('s_memrealtime s[100:101]')
    e('s_waitcnt lgkmcnt(0)'); e.lg_done = e.lg_n
    e('v_accvgpr_write_b32 a254, v0')
    e(f'v_accvgpr_read_b32 v0, a255')
    e(f'v_writelane_b32 v0, s58, {2*i}')
    e(f'v_writelane_b32 v0, s100, {2*i+1}')
    e('v_accvgpr_write_b32 a255, v0')
    e(f'v_accvgpr_read_b32 v0, a254')
def stamp_flush(e):
    if not C.stamps: return
    stamp(e, 'end')
    e(f's_lshl_b32 s58, s2, 2\ns_add_u32 s58, s58, s{sWAVE}\ns_lshl_b32 s58, s58, 8\ns_add_u32 s58, s58, {WS_DBG}')
    e(f'v_lshlrev_b32 v0, 2, v{vLANE}')
    e(f'buffer_store_dword a255, v0, {srd(S_WS)}, s58 offen')

def bf16_round(e, dst, src):
    e(f'v_cvt_pk_bf16_f32 v{dst}, v{src}, v{src}')
    e(f'v_and_b32 v{dst}, s{sMASK}, v{dst}')

def lane_addr_ops(dst, A, B, C_, D, E_, tmp, B2=0):
    ops = []
    first = True
    for (sh, w, k) in ((5, 1, A), (2, 2, B), (0, 1, C_), (4, 1, D), (1, 1, E_), (3, 1, B2)):
        if k == 0: continue
        ops.append(f'v_bfe_u32 v{tmp}, v{vLANE}, {sh}, {w}')
        if first:
            ops.append(f'v_mul_u32_u24 v{dst}, {k}, v{tmp}'); first = False
        elif k & (k - 1) == 0:
            ops.append(f'v_lshl_add_u32 v{dst}, v{tmp}, {k.bit_length()-1}, v{dst}')
        else:
            ops.append(f'v_mul_u32_u24 v{tmp}, {k}, v{tmp}'); ops.append(f'v_add_u32 v{dst}, v{dst}, v{tmp}')
    return ops

def panel_traddr_ops(half_stride, regs, t):
    ops = lane_addr_ops(regs[0][0], half_stride, 128, 64, 16, 8, t, B2=32)
    ops.append(f'v_xor_b32 v{regs[1][0]}, 32, v{regs[0][0]}')
    for tt in range(2):
        for w in range(1, len(regs[tt])):
            ops.append(f'v_add_u32 v{regs[tt][w]}, {65536*w}, v{regs[tt][0]}')
    return ops

def panel_voffset_ops(regs, ldw, t):
    ops = [f'v_lshrrev_b32 v{t}, 3, v{vLANE}', f'v_mul_u32_u24 v{t}, {ldw}, v{t}', f'v_and_b32 v{t+1}, 7, v{vLANE}',
           f'v_lshrrev_b32 v{t+2}, 3, v{vLANE}', f'v_and_b32 v{t+2}, 2, v{t+2}', f'v_xor_b32 v{t+1}, v{t+1}, v{t+2}',
           f'v_lshl_add_u32 v{regs[0]}, v{t+1}, 4, v{t}']
    for i in range(1, len(regs)):
        ops.append(f'v_add_u32 v{regs[i]}, {8*ldw-1024}, v{regs[i-1]}')
    return ops

def tr_reads(regs, off, second):
    def fn(k, f):
        out = []
        for i, o in enumerate((off, off + second)):
            w, oo = divmod(o, 65536)
            out.append(f'ds_read_b64_tr_b16 {k}[{f+2*i}:{f+2*i+1}], v{regs[w]} offset:{oo}')
        return out
    return fn

class Table:
    def __init__(self): self.lane = {0: [], 1: []}; self.thr = {0: [], 1: []}
    def text(self):
        out = []
        for role in (0, 1):
            out.append(f'.p2align 7\nL_tab{role}:')
            for g in self.lane[role] + [[lambda l: 0]*4] * (NLG - len(self.lane[role])):
                for l in range(64): out.append('.long ' + ', '.join('0x%x' % (f(l) & 0xffffffff) for f in g))
            for g in self.thr[role] + [[lambda w, l: 0]*4] * (NTG - len(self.thr[role])):
                for w in range(4):
                    for l in range(64): out.append('.long ' + ', '.join('0x%x' % (f(w, l) & 0xffffffff) for f in g))
        out.append('L_tabend:')
        return '\n'.join(out) + '\n'
TAB = Table()
NLG, NTG = 8, 3
LG_DST = ['v[2:5]', 'v[6:9]', 'v[10:13]', 'a[132:135]', 'a[136:139]', 'a[224:227]', 'a[228:231]', 'a[140:143]']
LG_DST_ATT = ['v[2:5]', 'v[6:9]', 'v[10:13]', 'a[132:135]', 'a[136:139]', 'a[232:235]', 'a[236:239]', 'a[140:143]']
TG_DST = ['a[144:147]', 'a[148:151]', 'a[152:155]']
def lane_fn(A, B, C_, D, E_, B2=0, K=0):
    return lambda l: (l >> 5)*A + ((l >> 2) & 3)*B + (l & 1)*C_ + ((l >> 4) & 1)*D + ((l >> 1) & 1)*E_ + ((l >> 3) & 1)*B2 + K

def prologue(e, early):
    e('s_cmp_ge_u32 s2, 256\ns_cbranch_scc0 L_go\ns_endpgm\nL_go:')
    if C.stamps:
        e('v_accvgpr_write_b32 a255, 0')
        stamp(e, 'start')
    e('s_load_dwordx16 s[64:79], s[0:1], 0')
    e('s_load_dwordx4 s[80:83], s[0:1], 64')
    e(f's_getpc_b64 s[{sPC}:{sPC+1}]')
    e('L_pc:')
    t = TMP
    e(f'v_lshrrev_b32 v{t}, 6, v0')
    e(f'v_and_b32 v{vLANE}, 63, v0')
    e(f'v_readfirstlane_b32 s{sWAVE}, v{t}')
    e(f's_and_b32 s{sT0}, s2, 7')
    e(f's_lshr_b32 s{sT1}, s2, 3')
    e(f's_lshr_b32 s{sSG}, s{sT0}, 1')
    e(f's_and_b32 s{sT0}, s{sT0}, 1')
    e(f's_lshl_b32 s{sT0}, s{sT0}, 3')
    e(f's_and_b32 s{sT2}, s{sT1}, 7')
    e(f's_add_u32 s{sTILE}, s{sT0}, s{sT2}')
    e(f's_lshr_b32 s{sROLE}, s{sT1}, 3')
    if C.attn_first: e(f's_sub_u32 s{sROLE}, 3, s{sROLE}')
    e(f'v_lshlrev_b32 v{vL16}, 4, v{vLANE}')
    e(f'v_lshlrev_b32 v{t+5}, 4, v0')
    e(f's_cmp_eq_u32 s{sROLE}, 3')
    e(f's_cselect_b32 s{sT0}, L_tab1-L_tab0, 0')
    e(f's_add_u32 s{sT0}, s{sT0}, L_tab0-L_pc+4096')
    e(f's_add_u32 s96, s{sPC}, s{sT0}')
    e(f's_addc_u32 s97, s{sPC+1}, 0')
    if C.code_touch:
        e(f'v_min_u32 v{t+6}, 7, v{vLANE}')
        e(f'v_lshl_add_u32 v{t+6}, v{t}, 3, v{t+6}')
        e(f's_lshl_b32 s{sT1}, s{sT1}, 5')
        e(f'v_add_u32 v{t+6}, s{sT1}, v{t+6}')
        e(f'v_lshlrev_b32 v{t+6}, 7, v{t+6}')
        e(f'v_min_u32 v{t+6}, L_tabend-L_pc-4, v{t+6}')
        e(f'global_load_dword v{t+7}, v{t+6}, s[{sPC}:{sPC+1}]')
    e(f's_mul_i32 s{sMY}, s{sSG}, 3')
    e(f's_add_u32 s{sMY}, s{sMY}, s{sROLE}')
    e(f's_add_u32 s{sT0}, s{sSG}, 12')
    e(f's_cmp_eq_u32 s{sROLE}, 3')
    e(f's_cselect_b32 s{sMY}, s{sT0}, s{sMY}')
    e(f's_lshl_b32 s{sT0}, s{sTILE}, 2')
    e(f's_add_u32 s{sT0}, s{sT0}, s{sWAVE}')
    e(f's_mul_i32 s{sXOFF}, s{sT0}, {32*1152}')
    e(f's_mul_i32 s{sFLG}, s{sTILE}, 10240')
    e(f's_add_u32 s{sFLG}, s{sFLG}, {WS_FLG}')
    e(f's_mov_b32 s{sONES}, 0x3f803f80')
    e(f's_mov_b32 s{sMASK}, 0xffff0000')
    vA, vC0, vC1, vB = TMP+24, TMP+25, TMP+26, TMP+27
    e(f's_and_b32 s{sT0}, s{sTILE}, 7')
    e(f's_mul_i32 s{sT1}, s{sT0}, 86')
    e(f's_lshr_b32 s{sT1}, s{sT1}, 8')
    e(f's_mul_i32 s{sT1}, s{sT1}, 3')
    e(f's_sub_u32 s{sT1}, s{sT0}, s{sT1}')
    e(f's_mul_i32 s{sT1}, s{sT1}, {3 if C.rot_f else 0}')
    if not C.rot_a: e(f's_mov_b32 s{sT0}, 0')
    e(f's_cmp_eq_u32 s{sROLE}, 3')
    e(f's_cselect_b32 s{sROT}, s{sT0}, s{sT1}')
    e(f's_lshl_b32 s{sT0}, s{sROT}, 3')
    e(f'v_lshrrev_b32 v{t}, 5, v{vLANE}')
    e(f'v_and_b32 v{t+1}, 31, v{vLANE}')
    e(f'v_xor_b32 v{t+1}, v{t+1}, v{t}')
    e(f'v_mul_u32_u24 v{t}, 1152, v{t}')
    e(f'v_add_u32 v{t+1}, s{sT0}, v{t+1}')
    e(f'v_subrev_u32 v{t+2}, 72, v{t+1}')
    e(f'v_min_u32 v{t+2}, v{t+1}, v{t+2}')
    e(f'v_lshl_add_u32 v{vA}, v{t+2}, 4, v{t}')
    e(f'v_add_u32 v{t+1}, 32, v{t+1}')
    e(f'v_subrev_u32 v{t+2}, 72, v{t+1}')
    e(f'v_min_u32 v{t+2}, v{t+1}, v{t+2}')
    e(f'v_lshl_add_u32 v{vB}, v{t+2}, 4, v{t}')
    e(f's_sub_u32 s{sT0}, s{sROT}, 1')
    e(f's_cselect_b32 s{sT0}, 8, s{sT0}')
    e(f's_lshl_b32 s{sT0}, s{sT0}, 7')
    e(f'v_lshrrev_b32 v{t}, 3, v{vLANE}')
    e(f'v_mul_u32_u24 v{t}, 1152, v{t}')
    e(f'v_add_u32 v{t}, s{sT0}, v{t}')
    e(f'v_and_b32 v{t+1}, 7, v{vLANE}')
    e(f'v_lshrrev_b32 v{t+2}, 4, v{vLANE}')
    e(f'v_xor_b32 v{t+1}, v{t+1}, v{t+2}')
    e(f'v_lshl_add_u32 v{vC0}, v{t+1}, 4, v{t}')
    e(f's_and_b32 s{sT0}, s{sROLE}, 1')
    e(f's_lshl_b32 s{sT0}, s{sT0}, 6')
    e(f'v_xor_b32 v{vC0}, s{sT0}, v{vC0}')
    e(f'v_xor_b32 v{vC1}, 64, v{vC0}')
    e(f's_mul_i32 s{sLDSW}, s{sWAVE}, 16896')
    e(f's_lshl_b32 s{sT3}, s{sWAVE}, 12')
    for n in range(4):
        e(f's_add_u32 s{sT0}, s{sROLE}, {n}')
        e(f's_and_b32 s{sT0}, s{sT0}, 3')
        e(f's_mul_i32 s{sT1}, s{sT0}, 9216')
        e(f's_add_u32 s{sQ+n}, s{sXOFF}, s{sT1}')
        e(f's_mul_i32 s{sT1}, s{sT0}, 4224')
        e(f's_add_u32 s{sQ+4+n}, s{sLDSW}, s{sT1}')
        e(f's_lshl_b32 s{sT1}, s{sT0}, 10')
        e(f's_add_u32 s{sQ+8+n}, s{sT3}, s{sT1}')
    e('s_waitcnt lgkmcnt(0)')
    def mksrd(b, p, nbytes): e(f's_mov_b32 s{b}, s{p}\ns_mov_b32 s{b+1}, s{p+1}\ns_mov_b32 s{b+2}, {nbytes}\ns_mov_b32 s{b+3}, 0x20000')
    stamp(e, 'kernarg')
    mksrd(S_X, 64, 2048*576*2)
    def ab(part, n, j):
        imm = 2304*(j & 1)
        so = f's{sQ+n}' if j < 2 else f's{sSOFF}'
        it = [f's_add_u32 m0, s{sQ+4+n}, {XA + part*67584 + 1056*j - imm}']
        it.append(f's_add_u32 s{sSOFF}, s{sQ+n}, 4608' if j == 2 else 's_nop 0')
        it.append(f'buffer_load_dwordx4 v{vB if part else vA}, {srd(S_X)}, {so} offen offset:{imm} lds')
        return it
    def cc(n):
        return [f's_add_u32 m0, s{sQ+8+n}, {XC}', 's_nop 0', f'buffer_load_dwordx4 v{[vC0, vC1][n & 1]}, {srd(S_X)}, s{sQ+n} offen lds']
    own = [ab(0, 0, j) for j in range(4)] + [ab(1, 0, j) for j in range(4)] + [cc(0)]
    restA = [ab(0, n, j) for n in range(1, 4) for j in range(4)]
    restB = [ab(1, n, j) for n in range(1, 4) for j in range(4)] + [cc(n) for n in range(1, 4)]
    if not C.early_first:
        for it in own:
            for x in it: e(x)
        stamp(e, 'own issued')
    for g in range(NLG):
        e(f'global_load_dwordx4 {LG_DST_ATT[g]}, v{vL16}, s[96:97] offset:{1024*g - 4096}')
    for g in range(NTG):
        e('s_add_u32 s96, s96, 4096\ns_addc_u32 s97, s97, 0')
        e(f'global_load_dwordx4 {TG_DST[g]}, v{t+5}, s[96:97]')
    for (b, p, nbytes) in [(S_WQKV, 66, 576*1728*2), (S_WPHI, 68, 32*18*18*2), (S_WO, 70, 576*576*2),
                           (S_W1, 74, 576*4608*2), (S_W2, 76, 576*4608*2), (S_OUT, 78, 2048*576*2), (S_DBG, 80, 256), (S_WS, 82, WS_USED)]:
        mksrd(b, p, nbytes)
    e(f's_and_b32 s{sT0}, s{sTILE}, 3')
    e(f's_mul_i32 s{sT0}, s{sT0}, {3 if C.vrot else 0}')
    e(f's_add_u32 s{sT0}, s{sT0}, s{sMY}')
    e(f's_cmp_ge_u32 s{sT0}, 12')
    e(f's_cselect_b32 s{sT1}, 12, 0')
    e(f's_sub_u32 s72, s{sT0}, s{sT1}')
    e(f's_cmp_eq_u32 s{sROLE}, 3')
    e(f's_cselect_b32 s72, s{sMY}, s72')
    z = TMP + 12
    for i in range(4): e(f'v_mov_b32 v{z+i}, 0')
    e(f's_mul_i32 s{sT0}, s{sWAVE}, 2560')
    e(f's_add_u32 s{sT0}, s{sT0}, s{sFLG}')
    e(f's_lshl_b32 s{sRDY}, s{sTILE}, 4')
    e(f's_cmp_eq_u32 s72, 11')
    e(f's_cselect_b32 s{sT0}, s{sT0}, {OOB}')
    e(f's_cselect_b32 s{sRDY}, s{sRDY}, {OOB}')
    for o_ in (0, 1024, 1536):
        e(f'buffer_store_dwordx4 v[{z}:{z+3}], v{vL16}, {srd(S_WS)}, s{sT0} offen offset:{o_} sc1')
    e(f's_cmp_eq_u32 s{sWAVE}, 0')
    e(f's_cselect_b32 s{sRDY}, s{sRDY}, {OOB}')
    e(f's_lshl_b32 s{sT0}, s{sWAVE}, 11')
    e(f's_add_u32 s{sFLG}, s{sFLG}, s{sT0}')
    e(f's_lshl_b32 s{sT0}, s72, 7')
    e(f's_add_u32 s{sA1}, s{sFLG}, s{sT0}')
    early(e)
    if C.early_first:
        for it in own:
            for x in it: e(x)
        stamp(e, 'own issued')
    be, bo, bc = XAD, XAD+1, XAD+2
    e(f'v_bfe_u32 v{t}, v{vLANE}, 1, 4')
    e(f'v_mul_u32_u24 v{t+1}, 1056, v{t}')
    e(f'v_and_b32 v{t+2}, 1, v{vLANE}')
    e(f'v_lshl_add_u32 v{t+1}, v{t+2}, 9, v{t+1}')
    e(f'v_lshrrev_b32 v{t+3}, 5, v{vLANE}')
    e(f'v_lshl_add_u32 v{t+1}, v{t+3}, 6, v{t+1}')
    e(f'v_add_u32 v{t+1}, s{sLDSW}, v{t+1}')
    e(f'v_lshlrev_b32 v{t+2}, 4, v{t+2}')
    e(f'v_add_u32 v{be}, v{t+1}, v{t+2}')
    e(f'v_sub_u32 v{bo}, v{t+1}, v{t+2}')
    e(f'v_add_u32 v{be+6}, 67584, v{be}')
    e(f'v_add_u32 v{bo+6}, 67584, v{bo}')
    e(f'v_and_b32 v{t}, 7, v{t}')
    e(f'v_lshlrev_b32 v{t+3}, 2, v{t+3}')
    e(f'v_xor_b32 v{t}, v{t}, v{t+3}')
    e(f'v_and_b32 v{t+1}, 31, v{vLANE}')
    e(f'v_lshlrev_b32 v{t+1}, 7, v{t+1}')
    e(f'v_lshl_add_u32 v{t+1}, v{t}, 4, v{t+1}')
    e(f'v_add_u32 v{t+1}, {XC}, v{t+1}')
    e(f'v_add_u32 v{bc}, s{sT3}, v{t+1}')
    for v in range(1, 4): e(f'v_xor_b32 v{bc+v}, {16*v}, v{bc}')
    s1 = [LNS, LNS+1]; s2 = [LNS+2, LNS+3]
    for r in s1 + s2: e(f'v_mov_b32 v{r}, 0')
    for it in restA:
        for x in it: e(x)
    tokA = e.vm_tok()
    stamp(e, 'restA issued')
    NB = C.nb_pre
    for it in restB[:NB]:
        for x in it: e(x)
    lt = {}
    def rd(ks):
        p, v = divmod(ks, 4)
        if p < 8:
            e(f'ds_read_b128 {X(ks)}, v{(bo if v & 1 else be) + 6*(p >> 2)} offset:{XA + 128*(p & 3) + 16*v}')
        else:
            e(f'ds_read_b128 {X(ks)}, v{bc+v}')
        lt[ks] = e.lg_tok()
    def p1(ks):
        e.wait(lg=lt[ks])
        for i in range(4):
            r = X0 + 4*ks + i
            e(f'v_dot2c_f32_bf16 v{s1[i%2]}, s{sONES}, v{r}')
            e(f'v_dot2c_f32_bf16 v{s2[i%2]}, v{r}, v{r}')
    e.wait(vm=tokA)
    stamp(e, 'xA landed')
    rb = restB[NB:]
    for ks in range(16):
        rd(ks)
        if ks % 4 == 3 and rb:
            for x in rb.pop(0): e(x)
    for ks in range(16):
        if rb:
            for x in rb.pop(0): e(x)
        p1(ks)
    assert not rb
    tokB = e.vm_tok()
    return dict(tokB=tokB, rd=rd, p1=p1)

_lbl = [0]
TAILCODE = []
def poll_check(e, load_text, vdst, tok, need, stmp):
    n = _lbl[0]; _lbl[0] += 1
    e.wait(vm=tok)
    e(f'v_readfirstlane_b32 s{stmp}, v{vdst}')
    e(f's_cmp_ge_u32 s{stmp}, {need}')
    e(f's_cbranch_scc0 L_sp{n}')
    e(f'L_ok{n}:')
    TAILCODE.append(f'L_sp{n}:\ns_sleep 1\n{load_text}\ns_waitcnt vmcnt(0)\nv_readfirstlane_b32 s{stmp}, v{vdst}\ns_nop 1\ns_cmp_ge_u32 s{stmp}, {need}\ns_cbranch_scc0 L_sp{n}\ns_branch L_ok{n}')

def poll_check_all(e, load_text, vdst, tok, stmp):
    n = _lbl[0]; _lbl[0] += 1
    e.wait(vm=tok)
    e(f'v_cmp_ne_u32 vcc, 0, v{vdst}')
    e(f's_cmp_eq_u64 vcc, -1')
    e(f's_cbranch_scc0 L_sp{n}')
    e(f'L_ok{n}:')
    TAILCODE.append(f'L_sp{n}:\ns_sleep 2\n{load_text}\ns_waitcnt vmcnt(0)\nv_cmp_ne_u32 vcc, 0, v{vdst}\ns_nop 1\ns_cmp_eq_u64 vcc, -1\ns_cbranch_scc0 L_sp{n}\ns_branch L_ok{n}')

def ln_finish(e, xs, ring, touches=(), maxpump=99):
    left = [maxpump]
    def pump():
        if left[0] > 0: ring.pump(1); left[0] -= 1
    e.wait(vm=xs['tokB'])
    stamp(e, 'x all landed')
    for ks in range(16, 36): xs['rd'](ks)
    for ks in range(16, 36):
        if ks % 2: pump()
        xs['p1'](ks)
    s1 = [LNS, LNS+1]; s2 = [LNS+2, LNS+3]
    a, b, c, d = LNS+4, LNS+5, LNS+6, LNS+7
    e(f'v_add_f32 v{a}, v{s1[0]}, v{s1[1]}')
    e(f'v_add_f32 v{c}, v{s2[0]}, v{s2[1]}')
    e(f'v_mov_b32 v{b}, v{a}')
    e(f'v_mov_b32 v{d}, v{c}')
    pump()
    e(f'v_permlane32_swap_b32 v{a}, v{b}')
    e(f'v_permlane32_swap_b32 v{c}, v{d}')
    e(f'v_add_f32 v{a}, v{a}, v{b}')
    e(f'v_add_f32 v{c}, v{c}, v{d}')
    e(f'v_mul_f32 v{a}, {f32(1.0/576)}, v{a}')
    e(f'v_mul_f32 v{c}, {f32(1.0/576)}, v{c}')
    e(f'v_fma_f32 v{c}, -v{a}, v{a}, v{c}')
    e(f'v_max_f32 v{c}, 0, v{c}')
    bf16_round(e, b, a)
    bf16_round(e, c, c)
    e(f'v_add_f32 v{c}, {f32(1e-5)}, v{c}')
    bf16_round(e, c, c)
    e(f'v_sqrt_f32 v{c}, v{c}')
    bf16_round(e, c, c)
    e(f'v_rcp_f32 v{c}, v{c}')
    pump()
    e(f'v_mul_f32 v{LNC}, {f32(LOG2E)}, v{c}')
    e(f'v_mul_f32 v{LNC+1}, -v{b}, v{LNC}')
    ring.pump(C.pre_touch_pump)
    for x in touches: e(x)
    stamp(e, 'stats done')

def norm_ops(ks, T, pk=False):
    Cc, NB = LNC, LNC + 1
    ops = []
    for i in range(4):
        r = X0 + 4*ks + i
        ops.append(f'v_lshlrev_b32 v{T+2*i}, 16, v{r}')
        ops.append(f'v_and_b32 v{T+2*i+1}, s{sMASK}, v{r}')
    if pk:
        for i in range(4):
            ops.append(f'v_pk_fma_f32 v[{T+2*i}:{T+2*i+1}], v[{T+2*i}:{T+2*i+1}], v[{Cc}:{Cc+1}], v[{Cc}:{Cc+1}] op_sel:[0,0,1] op_sel_hi:[1,0,1]')
    else:
        for i in range(8):
            ops.append(f'v_fma_f32 v{T+i}, v{T+i}, v{Cc}, v{NB}')
    for i in range(4):
        ops.append(f'v_cvt_pk_bf16_f32 v{X0+4*ks+i}, v{T+2*i}, v{T+2*i+1}')
    return ops

def add_norm(gap, per_ks, T, lead=2, ring=None):
    pre = []
    for ks in range(lead):
        pre += norm_ops(ks, T, pk=True)
        if ring is not None and ks % 2 == 1: pre.append(lambda: ring.pump(1))
    n = 36 - lead
    for i, ks in enumerate(range(lead, 36)):
        g0 = int(i * (35 * per_ks - 2) / n); g1 = int((i + 1) * (35 * per_ks - 2) / n)
        assert g1 <= ks * per_ks - 1 or True
        g1 = min(g1, ks * per_ks - 1); g0 = min(g0, g1 - 1)
        spread(gap, norm_ops(ks, T), g0, g1)
    return pre

def code_touch_op(label, dst, vtmp):
    return [f'v_lshlrev_b32 v{vtmp}, 7, v{vLANE}', f'v_add_u32 v{vtmp}, {label}-L_pc, v{vtmp}', f'v_min_u32 v{vtmp}, L_tabend-L_pc-4, v{vtmp}',
            f'global_load_dword v{dst}, v{vtmp}, s[{sPC}:{sPC+1}]']

def jit_touch(e, vaddr, vdst):
    def f():
        n = _lbl[0]; _lbl[0] += 1
        e(f'L_ct{n}:')
        e(f's_add_u32 s100, s{sPC}, L_ct{n}-L_pc+{C.ct_ahead}')
        e(f's_addc_u32 s101, s{sPC+1}, 0')
        e(f'global_load_dword v{vdst}, v{vaddr}, s[100:101]')
    return (C.ct_every, f) if C.ct_every else None
```

```python
from collections import defaultdict, deque
from asmlib import *

class Stage:
    def __init__(self, addr, size, items, name=''):
        self.addr = addr; self.size = size
        self.items = items
        self.tok = None
        self.name = name
        self.published = False

class Ring:
    def __init__(self, em):
        self.em = em
        self.stages = []
        self.released = 0
        self.queued = 0
        self.q = deque()
        self.reserved = []
        self.consumed = 0
        self.maxahead = None
    def add(self, st):
        self.stages.append(st); return len(self.stages) - 1
    def _free(self, st):
        lo, hi = st.addr, st.addr + st.size
        for j in range(self.released, self.queued):
            o = self.stages[j]
            if lo < o.addr + o.size and o.addr < hi: return False
        for (a, b) in self.reserved:
            if lo < b and a < hi: return False
        return True
    def refill(self, limit=None):
        n = 0
        while self.queued < len(self.stages) and self._free(self.stages[self.queued]) and (limit is None or n < limit) and (self.maxahead is None or self.queued - self.released < self.maxahead + 2):
            st = self.stages[self.queued]
            for k, it in enumerate(st.items):
                self.q.append((self.queued, it, k == len(st.items) - 1))
            self.queued += 1; n += 1
    def pump(self, n=1):
        while n > 0 and self.q:
            s, it, last = self.q.popleft()
            for x in it: self.em(x)
            if last: self.stages[s].tok = self.em.vm_tok()
            n -= 1
    def pump_all(self): self.pump(10**9)
    def barrier(self, publish=None, lg=False):
        if publish is not None:
            while self.stages[publish].tok is None:
                assert self.q, f'stage {publish} {self.stages[publish].name} never queued (released={self.released}, queued={self.queued})'
                self.pump(1)
            self.em.wait(vm=self.stages[publish].tok)
            for j in range(publish + 1): self.stages[j].published = True
        if lg: self.em.wait(lg=self.em.lg_tok())
        self.em('s_barrier')
        self.released = self.consumed
        self.refill()

def spread(gapfill, instrs, start, end):
    costs = [(x[1] if isinstance(x, tuple) else cost(x)) for x in instrs]
    tot = sum(costs); n = max(1, end - start)
    acc = 0
    for x, c in zip(instrs, costs):
        g = start + min(n - 1, int((acc + c / 2) * n / tot))
        gapfill[g].append(x[0] if isinstance(x, tuple) else x)
        acc += c

def run_stream(em, ring, mf, gapfill, frag_base, nfrag=12, group=4, ahead=8, fragk='a', pre=None, tail_fill=True, dma_min_gap=2, pre_first=False, dma_max_gap=2, dma_margin=20, dma_relax=4, quiet=(), ctouch=None):
    n = len(mf)
    toks = [None] * n
    last_of_stage = {}
    first_of_stage = {}
    for i, m in enumerate(mf):
        if m.get('stage') is not None:
            last_of_stage[m['stage']] = i
            first_of_stage.setdefault(m['stage'], i)
    bar_at = sorted(first_of_stage.values())
    def frag(i): return frag_base + (i % nfrag) * 4
    def issue_reads(j):
        m = mf[j]
        s = m.get('stage')
        if s is not None and not ring.stages[s].published:
            ring.barrier(publish=s)
        if m.get('reads'):
            f = frag(j)
            for x in m['reads'](fragk, f): em(x)
        toks[j] = em.lg_tok()
    if pre and pre_first:
        k = max(0, len(pre) - 20)
        for x in pre[:k]:
            x() if callable(x) else em(x)
        pre = pre[k:]
    for j in range(min(ahead, n)):
        issue_reads(j)
    if pre:
        for x in pre:
            x() if callable(x) else em(x)
    since = 0
    for i, m in enumerate(mf):
        if i % group == 0:
            em.wait(lg=toks[min(i + group - 1, n - 1)])
        if m.get('prewait'): m['prewait']()
        a = m.get('a') or f'{fragk}[{frag(i)}:{frag(i)+3}]'
        b = m['b']; d = m['acc']
        c = '0' if m.get('first') else d
        if m.get('swap'): a, b = b, a
        em(f'v_mfma_f32_32x32x16_bf16 {d}, {a}, {b}, {c}')
        s = m.get('stage')
        if s is not None and last_of_stage[s] == i:
            ring.consumed = max(ring.consumed, s + 1)
        j = i + ahead
        if j < n: issue_reads(j)
        if ring.q:
            since += 1
            hs = ring.q[0][0]
            dl = first_of_stage.get(hs, n + 10**6) - ahead - i
            left = sum(1 for x in ring.q if x[0] == hs)
            urgent = dl - dma_margin < left * dma_max_gap
            only_salu = not any('buffer_load' in x for x in ring.q[0][1])
            nb = next((x - ahead for x in bar_at if x - ahead > i), n)
            relaxed = max(dma_max_gap, min(dma_relax, (nb - i) // len(ring.q)))
            isquiet = any(a_ <= i < b_ for a_, b_ in quiet)
            if (only_salu or since >= (1 if urgent else relaxed)) and (urgent or not isquiet):
                ring.pump(1)
                if not only_salu: since = 0
        if ctouch and i % ctouch[0] == 5: ctouch[1]()
        for x in gapfill.pop(i, []):
            x() if callable(x) else em(x)
    if tail_fill:
        for g in sorted(gapfill):
            for x in gapfill[g]:
                x() if callable(x) else em(x)
        gapfill.clear()
```

```python
from common import *
from common import _stamp_n, _lbl

vD = [2, 3, 4]
vE = [5, 6, 7]
vTR = [[8, 9, 10], [11, 12, 13]]
H0 = 0; FR = 160
IDA = 232
YACC = X0 + 96
SACC = ACC0
sPB = sA0
sMYF = sA1
sPS = 93
sJ = 96
sV = 72
sFLQ = 97

def _pv(ldw, i): return lambda l: (l >> 3)*ldw + 16*((l & 7) ^ ((l >> 3) & 2)) + i*(8*ldw - 1024)
def _tr(hs, t, w): return lambda l: (lane_fn(hs, 128, 64, 16, 8, B2=32)(l) ^ (32*t)) + 65536*w
def _ident(m):
    def f(l):
        i, hfk = l & 31, l >> 5
        r = (i & 3) + 4*(i >> 3); hf = (i >> 2) & 1
        return (0x3f80 << (16*(r & 1))) if (hf == hfk and (r >> 1) == m) else 0
    return f
def _wo(i):
    def f(w, l):
        rho = min(40*w + 8*i + (l >> 3), 143)
        hfk, idx = divmod(rho, 72)
        return (18*(idx // 9) + 9*hfk + idx % 9)*1152 + 16*((l & 7) ^ ((l >> 3) & 2))
    return f
TAB.lane[0] = [
    [_pv(9216, 0), _pv(9216, 1), _pv(9216, 2), _pv(1152, 0)], [_pv(1152, 1), _pv(1152, 2), _tr(4096, 0, 0), _tr(4096, 0, 1)],
    [_tr(4096, 0, 2), _tr(4096, 1, 0), _tr(4096, 1, 1), _tr(4096, 1, 2)],
    [_tr(9216, 0, 0), _tr(9216, 0, 1), _tr(9216, 0, 2), _tr(9216, 1, 0)],
    [_tr(9216, 1, 1), _tr(9216, 1, 2), lambda l: (l & 31)*1152 + 64*(l >> 5), lambda l: 128*min(l, 15)],
    [_ident(0), _ident(1), _ident(2), _ident(3)], [_ident(4), _ident(5), _ident(6), _ident(7)],
    [lambda l: (9 - (l + 1) if l < 9 else 9 - 3*(l - 9) if l < 12 else 0), lambda l: (15 if l < 12 else 0), lambda l: 0, lambda l: 0],
]
TAB.thr[0] = [[_wo(0), _wo(1), _wo(2), _wo(3)], [_wo(4), lambda w, l: 128*(C.tl*w + min(l, C.tl - 1)), lambda w, l: (18*w + min(l, 17))*9216, lambda w, l: (18*w + min(l, 35) // 2)*9216 + 128*(min(l, 35) & 1)]]

def silu_ops(acc, hdst):
    ops = []
    T = TMP
    for g in range(4):
        t = T + 4 * (g % 2)
        for i in range(4): ops.append(f'v_exp_f32 v{t+i}, -v{acc+4*g+i}')
        for i in range(4): ops.append(f'v_add_f32 v{t+i}, 1.0, v{t+i}')
        for i in range(4): ops.append(f'v_rcp_f32 v{t+i}, v{t+i}')
        for i in range(4): ops.append(f'v_mul_f32 v{t+i}, v{acc+4*g+i}, v{t+i}')
        for i in range(2): ops.append(f'v_cvt_pk_bf16_f32 v{T+8+2*(g%2)+i}, v{t+2*i}, v{t+2*i+1}')
        for i in range(2): ops.append(f'v_accvgpr_write_b32 a{hdst+2*g+i}, v{T+8+2*(g%2)+i}')
    return ops

def group_scc(ops):
    out = []; i = 0
    while i < len(ops):
        if isinstance(ops[i], str) and ops[i].startswith('s_cmp'):
            out.append((ops[i] + '\n' + ops[i+1], 8)); i += 2
        else: out.append(ops[i]); i += 1
    return out

def ffn_path(e, xs):
    e(f's_mul_i32 s{sB1}, s{sMY}, 768')
    e(f's_mul_i32 s{sT1}, s{sWAVE}, {48*9216}')
    e(f's_add_u32 s{sB1}, s{sB1}, s{sT1}')
    e(f's_mul_i32 s{sLDSW}, s{sWAVE}, 6144')
    e(f's_mul_i32 s{sT0}, s{sROT}, {64*9216}')
    for k in range(3):
        e(f's_add_u32 s{80+k}, s{sB1}, s{sT0}')
        if k < 2:
            e(f's_add_u32 s{sT0}, s{sT0}, {192*9216}')
            e(f's_cmp_ge_u32 s{sT0}, {576*9216}')
            e(f's_cselect_b32 s{sT0}, 0, s{sT0}')
    ring = Ring(e)
    NS = 6
    def mk(idx, base, goff, ldw, regs, S, name):
        addr = (idx % NS) * 24576
        items = []
        for half in range(2):
            items.append([f's_add_u32 m0, s{sLDSW}, {addr + half*3072}', f's_add_u32 s{sSOFF}, s{base}, {goff + half*24*ldw}'])
            for i in range(3):
                items.append([f'buffer_load_dwordx4 v{regs[i]}, {srd(S)}, s{sSOFF} offen offset:{i*1024} lds'])
        return Stage(addr, 24576, items, name)
    g1 = {}; g2 = {}
    for p in range(6):
        for k in range(3):
            g1[p, k] = ring.add(mk(len(ring.stages), 80 + k, p*128, 9216, vD, S_W1, f'w1 p{p} k{k}'))
    order2 = [(0, 0), (1, 0), (0, 1), (1, 1)] + [(i, k) for i in range(2, 9) for k in range(2)]
    for (i, k) in order2:
        g2[i, k] = ring.add(mk(len(ring.stages), sQ + i, k*192*1152, 1152, vE, S_W2, f'w2 slot{i} k{k}'))
    ring.reserved = [(XA + 67584, XEND)]
    ring.maxahead = 4
    ring.barrier()
    stamp(e, 'barrier1')
    ring.pump(4)
    e(f'v_mov_b32 v{TMP+13}, 1')
    e(f'buffer_store_dword v{TMP+13}, v{TMP+12}, {srd(S_DBG)}, s{sRDY} offen sc1')
    su = [f's_mul_i32 s{sB2}, s{sMY}, {384*1152}', f's_mul_i32 s{sT1}, s{sWAVE}, {48*1152}', f's_add_u32 s{sB2}, s{sB2}, s{sT1}',
          f's_add_u32 s{sT0}, s{sV}, 1', f's_sub_u32 s{sT1}, s{sV}, 9', f's_mul_i32 s{sT1}, s{sT1}, 3',
          f's_cmp_lt_u32 s{sV}, 9', f's_cselect_b32 s{sT0}, s{sT0}, s{sT1}', f's_lshl_b32 s{sT0}, s{sT0}, 7']
    for i in range(9):
        su += [f's_cmp_ge_u32 s{sT0}, {9*128}', f's_cselect_b32 s{sT0}, 0, s{sT0}', f's_add_u32 s{sQ+i}, s{sB2}, s{sT0}', f's_add_u32 s{sT0}, s{sT0}, 128']
    su += [f's_mul_i32 s{sPS}, s{sTILE}, {P_TILE}', f's_lshl_b32 s{sT1}, s{sWAVE}, 12', f's_add_u32 s{sPS}, s{sPS}, s{sT1}',
           f's_mul_i32 s{sT1}, s{sV}, {P_Q}', f's_add_u32 s{sPB}, s{sPS}, s{sT1}',
           f's_cmp_lt_u32 s{sV}, 9', f's_cselect_b32 s{sFLQ}, s{sFLG}, {OOB}',
           f's_lshl_b32 s{sT1}, s{sV}, 14', f's_add_u32 s{sPS}, s{sPS}, s{sT1}',
           f's_mul_i32 s{sT1}, s{sB2}, {P_Q // 128}', f's_sub_u32 s{sPS}, s{sPS}, s{sT1}']
    tch = []
    if C.w1touch == 3:
        tch = [f's_and_b32 s{sT1}, s{sTILE}, 7', f's_mul_i32 s98, s{sT1}, {72*9216}', f's_mul_i32 s{sT1}, s{sMY}, 768', f's_add_u32 s98, s98, s{sT1}', 'v_accvgpr_read_b32 v15, a151', 's_nop 0']
        tch += [f'buffer_load_dword v{TMP+28}, v15, {srd(S_W1)}, s98 offen offset:{o_}' for o_ in (128, 384)[:C.w1n]]
    ln_finish(e, xs, ring, tch, maxpump=C.f_maxpump)
    ring.reserved = []

    mf = []; gap = defaultdict(list)
    st_ = {}
    spread(gap, group_scc(su), 2, 60)
    for p in range(6):
        accs = [ACC0 + 32*(p % 2), ACC0 + 32*(p % 2) + 16]
        start = len(mf)
        for ks in range(36):
            kb, v = divmod(ks, 4)
            st = g1[p, kb // 3]
            off = ring.stages[st].addr + (kb % 3)*8192 + v*1024
            for tt in range(2):
                mf.append(dict(stage=st, reads=tr_reads(vTR[tt], off, 512), b=X(ks), acc=f'v[{accs[tt]}:{accs[tt]+15}]', first=(ks == 0)))
        end = len(mf)
        ops = silu_ops(accs[0], H0 + 16*p) + silu_ops(accs[1], H0 + 16*p + 8)
        spread(gap, ops, end + 1, end + (70 if p < 5 else 62))
        if C.w1touch == 1 and p + C.w1ahead < 6:
            if p == 0:
                gap[start] += [f's_and_b32 s{sT1}, s{sTILE}, 7', f's_mul_i32 s98, s{sT1}, {72*9216}', f's_mul_i32 s{sT1}, s{sMY}, 768', f's_add_u32 s98, s98, s{sT1}', 'v_accvgpr_read_b32 v15, a150']
            gap[start + 1].append(f'buffer_load_dword v{TMP+28}, v15, {srd(S_W1)}, s98 offen offset:{128*(p + C.w1ahead)}')
        if C.w1touch == 2 and p in (0, 1):
            if p == 0:
                gap[start] += [f's_and_b32 s{sT1}, s{sTILE}, 7', f's_mul_i32 s98, s{sT1}, {72*9216}', f's_mul_i32 s{sT1}, s{sMY}, 768', f's_add_u32 s98, s98, s{sT1}', 'v_accvgpr_read_b32 v15, a151']
            gap[start + 1].append(f'buffer_load_dword v{TMP+28}, v15, {srd(S_W1)}, s98 offen offset:{256*(p + 1)}')
        if p == 1:
            gap[start + 4] += [f's_and_b32 s{sT1}, s{sTILE}, 7', f's_mul_i32 s{sT1}, s{sT1}, {48*1152}', f's_mul_i32 s75, s{sMY}, {384*1152}',
                               f's_add_u32 s75, s75, s{sT1}', f'v_accvgpr_read_b32 v{TMP+27}, a149',
                               f's_lshr_b32 s76, s2, 3', f's_sub_u32 s76, s76, {8 if C.attn_first else 0}', f's_mul_i32 s76, s76, {216*128}']
            NL = C.tl
            tl = [(S_W2, 75)] * (108 // NL if C.w2touch else 0) + [(S_WO, 76)] * (54 // NL if C.wotouch else 0)
            for n, (S_, sr) in enumerate(tl):
                gap[start + 6 + n * (C.t_span // len(tl))] += [f'buffer_load_dword v{TMP+28}, v{TMP+27}, {srd(S_)}, s{sr} offen', f's_add_u32 s{sr}, s{sr}, {4*NL*128}']
        if p in (0, 5): gap[end - 1].append(lambda: stamp(e, 'gemm1 panel'))
    G2 = len(mf)

    def acc2(i):
        if i == 8: return [YACC, YACC + 16]
        b = X0 + 32*(i % 2); return [b, b + 16]
    def store_ops(accs, i):
        tb = X0 + 64 + 16*(i % 2)
        ops = [f's_mul_i32 s{sST}, s{sQ+i}, {P_Q // 128}', f's_add_u32 s{sST}, s{sST}, s{sPS}']
        for part in range(4):
            tt, u = divmod(part, 2)
            a = accs[tt] + 8*u; T = tb + 4*part
            for k in range(4): ops.append(f'v_cvt_pk_bf16_f32 v{T+k}, v{a+2*k}, v{a+2*k+1}')
            ops.append((f'buffer_store_dwordx4 v[{T}:{T+3}], v{vL16}, {srd(S_WS)}, s{sST} offen offset:{part*1024} sc1', 30))
        ops.append((lambda: st_.__setitem__(('st', i), e.vm_tok()), 0))
        return ops
    vFV, vZ, vPZ = TMP + 16, TMP + 17, TMP + 15
    def flag_ops(i):
        def f():
            e.wait(vm=st_['st', i])
            e(f'v_mov_b32 v{vFV}, {i+1}')
            e(f'buffer_store_dword v{vFV}, v{vZ}, {srd(S_WS)}, s{sMYF} offen sc1')
        return f
    rl = f'buffer_load_dword v{vPZ}, v{vZ}, {srd(S_DBG)}, s{sRDY} offen sc1'
    def rdy1():
        e(f'v_mov_b32 v{vZ}, 0')
        e(f's_lshl_b32 s{sRDY}, s{sTILE}, 4')
        e(rl); st_['zp'] = e.vm_tok()
    gap[G2 - 100].append(rdy1)
    gap[G2 - 30].append(lambda: poll_check(e, rl, vPZ, st_['zp'], 1, sT1))

    vW = [TMP+0, TMP+1, TMP+2, TMP+3, TMP+4]
    vTW = [[TMP+5, TMP+6, TMP+7], [TMP+8, TMP+9, TMP+10]]
    vXO, vL4, vNEED, vFL = TMP+11, TMP+12, TMP+13, TMP+14
    sLW5 = 98; sWOB = sB1; sOB = 73; sXO = 74
    wst = []
    def wo_stage(idx, g):
        addr = (idx % NS) * 24576
        items = []
        for i in range(5):
            it = [f's_add_u32 m0, s{sLW5}, {addr + 1024*i}']
            it.append(f's_add_u32 s{sSOFF}, s{sWOB}, {g*144*1152}' if i == 0 else 's_nop 0')
            it.append(f'buffer_load_dwordx4 v{vW[i]}, {srd(S_WO)}, s{sSOFF} offen lds')
            items.append(it)
        return Stage(addr, 20480, items, f'wo g{g}')
    for g in range(4): wst.append(ring.add(wo_stage(len(ring.stages), g)))
    fl = f'buffer_load_dword v{vFL}, v{vL4}, {srd(S_WS)}, s{sFLQ} offen sc1'
    def mask_check(tok, mask):
        n = _lbl[0]; _lbl[0] += 1
        e.wait(vm=tok)
        body = f'v_cmp_ge_u32 vcc, v{vFL}, v{vNEED}\ns_nop 1\ns_and_b32 s{sT0}, vcc_lo, {mask}\ns_cmp_eq_u32 s{sT0}, {mask}\ns_cbranch_scc0 L_sp{n}'
        e(body)
        e(f'L_ok{n}:')
        TAILCODE.append(f'L_sp{n}:\ns_sleep 1\n{fl}\ns_waitcnt vmcnt(0)\n{body}\ns_branch L_ok{n}')

    srcs = [('o', a_) for a_ in range(8)] + [('n', m) for m in range(3)]
    srcs.sort(key=lambda x: x[1] if x[0] == 'o' else 3*x[1] + 2)
    sreg = [64, 65, 66, 67, 68, 69, 70, 71, 75, 76, 77]
    batches = [(sl, n) for sl, n in ((C.b1_slot, C.b1_n), (C.b2_slot, C.b2_n), (C.b3_slot, C.b3_n)) if n]
    nIn = sum(n for _, n in batches)
    ibuf = [96, 112, 208, 128]
    bmask = [83, 94, 95]
    pt = {}
    quiet = []
    def PBq(n, part):
        if n < nIn: r = ibuf[n % 4] + 4*part; return f'a[{r}:{r+3}]'
        bt = ([H0 + 16*i for i in range(6)] + ibuf + [None])[n - nIn]
        if bt is None: r = TMP + 16 + 4*part; return f'v[{r}:{r+3}]'
        return f'a[{bt+4*part}:{bt+4*part+3}]'
    def pload(n):
        for part in range(4):
            e(f'buffer_load_dwordx4 {PBq(n, part)}, v{vL16}, {srd(S_WS)}, s{sreg[n]} offen offset:{part*1024} sc1')
        pt[n] = e.vm_tok()
    def ident_mf(n, first):
        out = []
        for part in range(4):
            tt, u = divmod(part, 2)
            out.append(dict(stage=None, a=f'a[{IDA+4*u}:{IDA+4*u+3}]', b=PBq(n, part), acc=f'v[{YACC+16*tt}:{YACC+16*tt+15}]', first=(first and u == 0)))
        out[0]['prewait'] = lambda: e.wait(vm=pt[n])
        return out
    slot_start = {}
    yinit = False
    for (i, k) in order2:
        st = g2[i, k]
        if k == 0: slot_start[i] = len(mf)
        for kk in range(12):
            kb, v = divmod(kk, 4)
            off = ring.stages[st].addr + kb*8192 + v*1024
            hb = H0 + 16*(3*k + kb) + 4*v
            for tt in range(2):
                a = acc2(i)[tt]
                mf.append(dict(stage=st, reads=tr_reads(vTR[tt], off, 512), b=f'a[{hb}:{hb+3}]', acc=f'v[{a}:{a+15}]', first=(k == 0 and kk == 0 and not (i == 8 and yinit))))
        if i == 8: yinit = True
        if k == 1:
            end = len(mf)
            if i < 8:
                sp = C.st_span if i < 7 else C.st_span7
                spread(gap, store_ops(acc2(i), i), end + 1, end + sp)
                if i >= C.flag_from: gap[end + (C.flag_at if i < 7 else C.flag_at7)].append(flag_ops(i))
            if C.slotstamps and i < 8: gap[end - 1].append(lambda i=i: stamp(e, f'slot{i}'))
            n0 = 0
            for bi, (sl, n) in enumerate(batches):
                if min(sl + 1, 8) == i:
                    c = slot_start[sl] + (C.b_off if sl < 8 else C.b_off8)
                    gap[c - C.poll_dist].append(lambda bi=bi: (e(fl), st_.__setitem__(('bp', bi), e.vm_tok())))
                    gap[c].append(lambda bi=bi: mask_check(st_['bp', bi], f's{bmask[bi]}'))
                    for j in range(n): gap[c + 1 + 2*j].append(lambda j=j, n0=n0: pload(n0 + j))
                    quiet.append((c - C.q_pre, c + C.q_len))
                    if sl < 8:
                        for j in range(n):
                            mf.extend(ident_mf(n0 + j, not yinit)); yinit = True
                n0 += n
    END2 = len(mf)
    w = TMP + 19
    ops = [f'v_accvgpr_read_b32 v{vW[i]}, a{144+i}' for i in range(5)] + [f'v_accvgpr_read_b32 v{TMP+5+i}, a{132+i}' for i in range(8)]
    ops += [f'v_accvgpr_read_b32 v{w}, a140', f'v_accvgpr_read_b32 v{w+2}, a141', f'v_add_u32 v{w}, s{sV}, v{w}',
            f'v_subrev_u32 v{w+1}, 9, v{w}', f'v_min_u32 v{w}, v{w}, v{w+1}', f'v_and_b32 v{w}, v{w}, v{w+2}', f'v_add_u32 v{vNEED}, 1, v{w}',
            f's_mul_i32 s{sLW5}, s{sWAVE}, 5120', f's_min_u32 s{sWOB}, s{sV}, 8', f's_lshl_b32 s{sWOB}, s{sWOB}, 7',
            f's_add_u32 s{sXO}, s{sWOB}, s{sXOFF}', f's_add_u32 s{sOB}, s{sXOFF}, {WS_O}']
    nE = C.tail_early
    ops += ['s_mov_b32 s78, 0', 's_mov_b32 s79, 0xf000' if C.o_with_late else 's_mov_b32 s79, 0'] + [f's_mov_b32 s{m}, 0' for m in bmask]
    ops += [(f's_cmp_lt_u32 s{sV}, 9\ns_cselect_b32 s{sPB}, s{sPB}, {OOB}\ns_cselect_b32 s{sT0}, -1, 0\nv_and_b32 v{vNEED}, s{sT0}, v{vNEED}', 16)]
    def mreg(n):
        n0 = 0
        for bi, (sl, nn) in enumerate(batches):
            if n < n0 + nn: return bmask[bi]
            n0 += nn
        return 78 if n < nE else 79
    for n, (kind, v) in enumerate(srcs):
        sj = sreg[n]
        if kind == 'o':
            o_ = [f's_add_u32 s{sj}, s{sV}, {8 - v}', f's_cmp_ge_u32 s{sj}, 9', f's_cselect_b32 s{sT0}, 9, 0', f's_sub_u32 s{sj}, s{sj}, s{sT0}']
        else:
            o_ = [f's_mul_i32 s{sj}, s{sV}, 86', f's_lshr_b32 s{sj}, s{sj}, 8', f's_add_u32 s{sj}, s{sj}, {3 - v}', f's_cmp_ge_u32 s{sj}, 3',
                  f's_cselect_b32 s{sT0}, -6, -9', f's_sub_u32 s{sj}, s{sj}, s{sT0}']
        o_ += [f's_bitset1_b32 s{mreg(n)}, s{sj}', f's_lshl_b32 s{sj}, s{sj}, 14', f's_add_u32 s{sj}, s{sj}, s{sPB}']
        ops.append(('\n'.join(o_), 4*len(o_)))
    spread(gap, ops, G2 + 64, min(slot_start[6] - 12, slot_start[batches[0][0]] + C.b_off - C.poll_dist - 2) if batches else slot_start[6] - 12)
    XR = 144
    for part in range(4):
        gap[slot_start[6] + 26 + 5*part].append(f'buffer_load_dwordx4 a[{XR+4*part}:{XR+4*part+3}], v{vXO}, {srd(S_X)}, s{sXO} offen offset:{16*part}')
    gap[END2 - C.poll_e].append(lambda: (e(fl), st_.__setitem__('p1', e.vm_tok())))
    pre = add_norm(gap, 2, TMP + 12, lead=C.ffn_lead, ring=ring)
    if C.ct_every: e(f'v_min_u32 v15, {C.ct_lines - 1}, v{vLANE}\nv_lshlrev_b32 v15, 7, v15')
    run_stream(e, ring, mf, gap, FR, pre=pre, pre_first=True, quiet=quiet, dma_relax=C.dma_relax, ctouch=jit_touch(e, 15, TMP + 29))
    stamp(e, 'gemm2 done')
    e(f's_cmp_lt_u32 s{sV}, 9')
    e('s_cbranch_scc0 L_nonowner')
    sv = _stamp_n[0]
    def ident(n):
        im = ident_mf(n, False)
        im[0]['prewait']()
        for m in im: e(f"v_mfma_f32_32x32x16_bf16 {m['acc']}, {m['a']}, {m['b']}, {m['acc']}")
    oregs = [ACC0 + 32 + 4*i for i in range(8)] + [X0 + 128 + 4*i for i in range(4)] + [X0 + 4*i for i in range(24)]
    def OQ(ks): r = oregs[ks]; return f'v[{r}:{r+3}]'
    def oload(ks):
        if ks and ks % 4 == 0: e(f's_add_u32 s{sOB}, s{sOB}, 4096')
        e(f'buffer_load_dwordx4 {OQ(ks)}, v{vL16}, {srd(S_WS)}, s{sOB} offen offset:{1024*(ks % 4)} sc1')
        st_['o', ks] = e.vm_tok()
    ring.pump_all()
    pend = [n for n in range(nIn) if n >= nIn - (batches[-1][1] if batches and batches[-1][0] == 8 else 0)]
    assert nIn <= nE
    if nE > nIn:
        mask_check(st_['p1'], 's78')
        stamp(e, 'early ready')
    p2 = st_['p1']
    for n in range(nIn, nE):
        if n - nIn >= 6:
            while pend and pend[0] < nIn: ident(pend.pop(0))
        pload(n); pend.append(n)
        if n == max(nIn, nE - C.poll_l): e(fl); p2 = e.vm_tok()
        if len(pend) > 3: ident(pend.pop(0))
    mask_check(p2, 's79')
    stamp(e, 'late ready')
    while pend and pend[0] < nIn: ident(pend.pop(0))
    for n in range(nE, 11): pload(n)
    if not C.o_with_late:
        if C.o_reuse: mask_check(p2, 0xf000)
        else:
            e(fl); p3 = e.vm_tok()
            for n in pend: ident(n)
            pend = []
            if not C.fake_o: mask_check(p3, 0xf000)
        stamp(e, 'o ready')
    NPRE = C.o_pre
    for ks in range(NPRE): oload(ks)
    for n in pend + list(range(nE, 11)): ident(n)
    GT = TMP + 16
    ep = []
    for i0 in range(0, 32, 4):
        for i in range(4): ep.append(f'v_exp_f32 v{GT+i}, -v{YACC+i0+i}')
        for i in range(4): ep.append(f'v_add_f32 v{GT+i}, 1.0, v{GT+i}')
        for i in range(4): ep.append(f'v_rcp_f32 v{GT+i}, v{GT+i}')
        for i in range(4): ep.append(f'v_mul_f32 v{YACC+i0+i}, {f32(LN2*LN2)}, v{YACC+i0+i}')
        for i in range(4): ep.append(f'v_mul_f32 v{YACC+i0+i}, v{YACC+i0+i}, v{GT+i}')
    mf = []; gap = defaultdict(list)
    for g_ in range(4):
        st = wst[g_]
        for s in range(9):
            ks = 9*g_ + s
            off = ring.stages[st].addr + 1024*s
            for tt in range(2):
                a = SACC + 16*tt
                d = dict(stage=st, reads=tr_reads(vTW[tt], off, 512), b=OQ(ks), acc=f'v[{a}:{a+15}]', first=(ks == 0))
                if tt == 0: d['prewait'] = (lambda ks=ks: e.wait(vm=st_['o', ks]))
                mf.append(d)
            if ks + NPRE < 36: gap[2*ks].append(lambda ks=ks: oload(ks + NPRE))
    spread(gap, ep, 0, 60)
    XF = ACC0 + 32
    xo = []
    for i in range(16):
        xo += [f'v_accvgpr_read_b32 v{GT+4+(i%2)}, a{XR+i}', f'v_lshlrev_b32 v{XF+2*i}, 16, v{GT+4+(i%2)}', f'v_and_b32 v{XF+2*i+1}, s{sMASK}, v{GT+4+(i%2)}']
    spread(gap, xo, 60, 72)
    run_stream(e, ring, mf, gap, FR)
    stamp(e, 'wo done')
    for part in range(4):
        y = YACC + 8*part; s = SACC + 8*part; xf = XF + 8*part; tt = X0 + 4*part
        for i in range(4): e(f'v_pk_fma_f32 v[{xf+2*i}:{xf+2*i+1}], v[{s+2*i}:{s+2*i+1}], v[{y+2*i}:{y+2*i+1}], v[{xf+2*i}:{xf+2*i+1}]')
        for i in range(4): e(f'v_cvt_pk_bf16_f32 v{tt+i}, v{xf+2*i}, v{xf+2*i+1}')
        e(f'buffer_store_dwordx4 v[{tt}:{tt+3}], v{vXO}, {srd(S_OUT)}, s{sXO} offen offset:{16*part}{" sc1" if C.out_sc1 else ""}')
    stamp(e, 'out issued')
    if C.stamps: e.wait_all()
    stamp_flush(e)
    e('s_endpgm')
    e('L_nonowner:')
    _stamp_n[0] = sv
    e('s_nop 15')
    for x in store_ops(acc2(8), 8):
        x = x[0] if isinstance(x, tuple) else x
        x() if callable(x) else e(x)
    e.wait_all()
    flag_ops(8)()
    if C.stamps: e.wait_all()
    stamp_flush(e)
    e('s_endpgm')
```

```python
import sys
sys.path.insert(0, 'gen2')
from common import *
import common, ffn, attn

C.tlbwarm = 0; C.smooth = 1; C.tab_late = 1; C.c_lead = 3; C.tail_n1 = 8; C.o_fast = 3; C.poll3 = 12; C.o_rot = 0; C.o_pf = 0; C.w1n = 2; C.o_reuse = 1; C.ct_every = 0; C.ct_ahead = 4096; C.ct_lines = 32; C.tl = 27; C.t_span = 270; C.w1touch = 0; C.w1ahead = 2; C.fake_o = 0; C.f_maxpump = 4; C.attn_first = 1; C.a_maxpump = 8; C.wl_at = 2; C.wotouch = 1; C.qtouch = 1; C.out_sc1 = 0; C.rot_a = 1; C.rot_f = 1; C.slotstamps = 0; C.early_first = 0; C.vrot = 1; C.nb_pre = 3; C.pre_touch_pump = 0; C.w2touch = 1
C.st_span = 20; C.flag_at = 54; C.st_span7 = 10; C.flag_at7 = 34; C.flag_from = 5
C.tail_early = 9; C.poll_e = 24; C.poll_l = 2; C.o_with_late = 0; C.o_pre = 8
C.b1_slot = 4; C.b1_n = 0; C.b2_slot = 6; C.b2_n = 0; C.b3_slot = 8; C.b3_n = 0; C.b_off = 22; C.b_off8 = 12; C.poll_dist = 36; C.q_pre = 6; C.q_len = 50; C.dma_relax = 4
C.kslot = 1; C.kv_dma_gap = 2; C.attn_lead = 2; C.q_dma_gap = 2
C.p1_at = 1; C.rs_sig1 = 28; C.rs_poll1 = 48; C.rs_pd = 24; C.rs_ld = 44; C.rs_sum = 16; C.rs_sig2 = 30; C.sig2_early = 1; C.poll2_at = 1

def early(e):
    pass

def kd(name, vgpr, accum, sgpr=102):
    return f'''.p2align 6
.amdhsa_kernel {name}
  .amdhsa_next_free_vgpr {vgpr}
  .amdhsa_next_free_sgpr {sgpr}
  .amdhsa_accum_offset {accum}
  .amdhsa_group_segment_fixed_size 0
  .amdhsa_kernarg_size 80
  .amdhsa_user_sgpr_count 2
  .amdhsa_user_sgpr_kernarg_segment_ptr 1
  .amdhsa_system_sgpr_workgroup_id_x 1
.end_amdhsa_kernel
'''

def build(path, verbose=False):
    e = Em()
    xs = prologue(e, early)
    e(f's_cmp_eq_u32 s{sROLE}, 3')
    e('s_cbranch_scc1 L_attn')
    sv = (e.vm_n, e.lg_n, e.vm_done, e.lg_done); sn = common._stamp_n[0]
    ffn.ffn_path(e, xs)
    e('L_attn:')
    e.vm_n, e.lg_n, e.vm_done, e.lg_done = sv; common._stamp_n[0] = sn
    e('s_nop 7')
    attn.attn_path(e, xs)
    for x in TAILCODE: e(x)
    e('L_end:')
    e('s_endpgm')
    n1 = e.fix_hazards(verbose)
    hdr = open(f'cdna_kernels/{NAME}.s.ref').read().split('\n')
    hdr = [l for l in hdr if l.startswith(';') and '@launch' not in l and 'Override' not in l and 'grid=ceil' not in l]
    out = '\n'.join(hdr) + '\n'
    out += '; cfg ' + ' '.join(a for a in sys.argv[1:] if a.startswith('--')) + '\n'
    out += f'; @launch grid=(256,1,1) block=(256,1,1) lds=163840\n'
    out += '.amdgcn_target "amdgcn-amd-amdhsa--gfx950"\n.text\n'
    nm = NAME + '_kernel'
    out += f'.globl {nm}\n.p2align 8\n.type {nm},@function\n{nm}:\n' + e.text() + TAB.text()
    out += '.section .rodata,"a"\n' + kd(nm, 512, 256)
    open(path, 'w').write(out)
    print(f'wrote {path}: {len(e.ins)} instrs, hazard pads {n1}')

if __name__ == '__main__':
    C.stamps = 1 if '-s' in sys.argv else 2 if '-l' in sys.argv else 3 if '-d' in sys.argv else 0
    for a in sys.argv[1:]:
        if a.startswith('--'):
            k, v = a[2:].split('='); setattr(C, k, int(v))
    args = [a for a in sys.argv[1:] if not a.startswith('-')]
    build(args[0] if args else f'cdna_kernels/{NAME}.s', verbose='-v' in sys.argv)
```

```python
import sys, struct
from asmlib import *
from engine import *
from collections import defaultdict

NAME = 'recurrent_scan__linear_kernel_hedgehog__dense_activation_silu__prompt'
LOG2E = 1.4426950408889634
LN2 = 0.6931471805599453
def f32(x): return '0x%08x' % struct.unpack('<I', struct.pack('<f', x))[0]

class Cfg:
    stamps = False
    code_touch = True
    ffn_lead = 30
    attn_lead = 28
C = Cfg()

WS_P = 0
P_Q = 12 * 16384; P_TILE = 9 * P_Q
WS_O = 16 * P_TILE
WS_P1 = WS_O + 64 * 36864
WS_F = WS_P1 + 4 * 40 * 16384
WS_FLG = WS_F + 4 * 24 * 1024
WS_DBG = WS_FLG + 16 * 10240
WS_SIZE = 268435456
WS_USED = WS_DBG + (1 << 20)
OOB = 0x40000000

S_X, S_W1, S_W2, S_WS, S_WQKV, S_WPHI, S_WO, S_DBG, S_OUT = 8, 12, 16, 20, 24, 28, 32, 36, 4
sWAVE, sTILE, sROLE, sSG = 40, 41, 42, 43
sXOFF = 44
sONES, sMASK = 45, 46
sLDSW = 47
sB1, sB2 = 48, 49
sT0, sT1, sT2, sT3 = 50, 51, 52, 53
sSOFF = 54
sFLG = 55
sST = 56
sA0, sA1 = 57, 62
sPC = 60
sMY = 63
sRDY = 99
sROT = 3
sQ = 84
def srd(b): return f's[{b}:{b+3}]'

vLANE = 1
vL16 = 14
X0 = 16
ACC0 = 160
TMP = 224
def X(ks): return f'v[{X0+4*ks}:{X0+4*ks+3}]'

XA = 6144
XC = XA + 2*67584
XEND = XC + 16384
XAD = ACC0
LNS = ACC0 + 8
LNC = TMP + 30

_stamp_n = [0]
_lbl = [0]
def stamp(e, name=''):
    if not C.stamps or (C.stamps == 2 and name not in ('start', 'end')): return
    if C.stamps == 3 and name not in ('start', 'xA landed', 'stats done', 'gemm1 panel', 'gemm2 done', 'KV gemm', 'kv mfma', 'Q gemm', 'end'): return
    i = _stamp_n[0]; _stamp_n[0] += 1
    assert i < 32
    e('s_memtime s[58:59]')
    e('s_memrealtime s[100:101]')
    e('s_waitcnt lgkmcnt(0)'); e.lg_done = e.lg_n
    e('v_accvgpr_write_b32 a254, v0')
    e(f'v_accvgpr_read_b32 v0, a255')
    e(f'v_writelane_b32 v0, s58, {2*i}')
    e(f'v_writelane_b32 v0, s100, {2*i+1}')
    e('v_accvgpr_write_b32 a255, v0')
    e(f'v_accvgpr_read_b32 v0, a254')
def stamp_flush(e):
    if not C.stamps: return
    stamp(e, 'end')
    if C.stamps == 3:
        n = _lbl[0]; _lbl[0] += 1
        e(f's_lshl_b32 s58, s2, 2\ns_add_u32 s58, s58, s{sWAVE}\ns_mov_b32 s59, 0\ns_cmp_eq_u32 s58, 32\ns_cbranch_scc1 L_dg{n}\ns_mov_b32 s59, 32\ns_cmp_eq_u32 s58, 800\ns_cbranch_scc0 L_dx{n}\nL_dg{n}:')
        e('v_accvgpr_read_b32 v0, a255\ns_nop 1\nv_readlane_b32 s100, v0, 1\nv_mov_b32 v2, 0')
        for i in range(6):
            e(f'v_readlane_b32 s101, v0, {2*(i+1)+1}\ns_nop 3\ns_sub_u32 s101, s101, s100\nv_mov_b32 v3, s101')
            e(f'buffer_store_dword v3, v2, {srd(S_DBG)}, s59 offen offset:{4*(i + 1 + i // 3)}')
        e(f'L_dx{n}:')
        return
    e(f's_lshl_b32 s58, s2, 2\ns_add_u32 s58, s58, s{sWAVE}\ns_lshl_b32 s58, s58, 8\ns_add_u32 s58, s58, {WS_DBG}')
    e(f'v_lshlrev_b32 v0, 2, v{vLANE}')
    e(f'buffer_store_dword a255, v0, {srd(S_WS)}, s58 offen')

def bf16_round(e, dst, src):
    e(f'v_cvt_pk_bf16_f32 v{dst}, v{src}, v{src}')
    e(f'v_and_b32 v{dst}, s{sMASK}, v{dst}')

def lane_addr_ops(dst, A, B, C_, D, E_, tmp, B2=0):
    ops = []
    first = True
    for (sh, w, k) in ((5, 1, A), (2, 2, B), (0, 1, C_), (4, 1, D), (1, 1, E_), (3, 1, B2)):
        if k == 0: continue
        ops.append(f'v_bfe_u32 v{tmp}, v{vLANE}, {sh}, {w}')
        if first:
            ops.append(f'v_mul_u32_u24 v{dst}, {k}, v{tmp}'); first = False
        elif k & (k - 1) == 0:
            ops.append(f'v_lshl_add_u32 v{dst}, v{tmp}, {k.bit_length()-1}, v{dst}')
        else:
            ops.append(f'v_mul_u32_u24 v{tmp}, {k}, v{tmp}'); ops.append(f'v_add_u32 v{dst}, v{dst}, v{tmp}')
    return ops

def panel_traddr_ops(half_stride, regs, t):
    ops = lane_addr_ops(regs[0][0], half_stride, 128, 64, 16, 8, t, B2=32)
    ops.append(f'v_xor_b32 v{regs[1][0]}, 32, v{regs[0][0]}')
    for tt in range(2):
        for w in range(1, len(regs[tt])):
            ops.append(f'v_add_u32 v{regs[tt][w]}, {65536*w}, v{regs[tt][0]}')
    return ops

def panel_voffset_ops(regs, ldw, t):
    ops = [f'v_lshrrev_b32 v{t}, 3, v{vLANE}', f'v_mul_u32_u24 v{t}, {ldw}, v{t}', f'v_and_b32 v{t+1}, 7, v{vLANE}',
           f'v_lshrrev_b32 v{t+2}, 3, v{vLANE}', f'v_and_b32 v{t+2}, 2, v{t+2}', f'v_xor_b32 v{t+1}, v{t+1}, v{t+2}',
           f'v_lshl_add_u32 v{regs[0]}, v{t+1}, 4, v{t}']
    for i in range(1, len(regs)):
        ops.append(f'v_add_u32 v{regs[i]}, {8*ldw-1024}, v{regs[i-1]}')
    return ops

def tr_reads(regs, off, second):
    def fn(k, f):
        out = []
        for i, o in enumerate((off, off + second)):
            w, oo = divmod(o, 65536)
            out.append(f'ds_read_b64_tr_b16 {k}[{f+2*i}:{f+2*i+1}], v{regs[w]} offset:{oo}')
        return out
    return fn

class Table:
    def __init__(self): self.lane = {0: [], 1: []}; self.thr = {0: [], 1: []}
    def text(self):
        out = []
        for role in (0, 1):
            out.append(f'.p2align 7\nL_tab{role}:')
            for g in self.lane[role] + [[lambda l: 0]*4] * (NLG - len(self.lane[role])):
                for l in range(64): out.append('.long ' + ', '.join('0x%x' % (f(l) & 0xffffffff) for f in g))
            for g in self.thr[role] + [[lambda w, l: 0]*4] * (NTG - len(self.thr[role])):
                for w in range(4):
                    for l in range(64): out.append('.long ' + ', '.join('0x%x' % (f(w, l) & 0xffffffff) for f in g))
        out.append('L_tabend:')
        return '\n'.join(out) + '\n'
TAB = Table()
NLG, NTG = 8, 3
LG_DST = ['v[2:5]', 'v[6:9]', 'v[10:13]', 'a[132:135]', 'a[136:139]', 'a[224:227]', 'a[228:231]', 'a[140:143]']
LG_DST_ATT = ['v[2:5]', 'v[6:9]', 'v[10:13]', 'a[132:135]', 'a[136:139]', 'a[232:235]', 'a[236:239]', 'a[140:143]']
TG_DST = ['a[144:147]', 'a[148:151]', 'a[152:155]']
def lane_fn(A, B, C_, D, E_, B2=0, K=0):
    return lambda l: (l >> 5)*A + ((l >> 2) & 3)*B + (l & 1)*C_ + ((l >> 4) & 1)*D + ((l >> 1) & 1)*E_ + ((l >> 3) & 1)*B2 + K

def prologue(e, early):
    e('s_cmp_ge_u32 s2, 256\ns_cbranch_scc0 L_go\ns_endpgm\nL_go:')
    if C.stamps:
        e('v_accvgpr_write_b32 a255, 0')
        stamp(e, 'start')
    e('s_load_dwordx16 s[64:79], s[0:1], 0')
    e('s_load_dwordx4 s[80:83], s[0:1], 64')
    e(f's_getpc_b64 s[{sPC}:{sPC+1}]')
    e('L_pc:')
    t = TMP
    e(f'v_lshrrev_b32 v{t}, 6, v0')
    e(f'v_and_b32 v{vLANE}, 63, v0')
    e(f'v_readfirstlane_b32 s{sWAVE}, v{t}')
    e(f's_and_b32 s{sT0}, s2, 7')
    e(f's_lshr_b32 s{sT1}, s2, 3')
    e(f's_lshr_b32 s{sSG}, s{sT0}, 1')
    e(f's_and_b32 s{sT0}, s{sT0}, 1')
    e(f's_lshl_b32 s{sT0}, s{sT0}, 3')
    e(f's_and_b32 s{sT2}, s{sT1}, 7')
    e(f's_add_u32 s{sTILE}, s{sT0}, s{sT2}')
    e(f's_lshr_b32 s{sROLE}, s{sT1}, 3')
    if C.attn_first: e(f's_sub_u32 s{sROLE}, 3, s{sROLE}')
    e(f'v_lshlrev_b32 v{vL16}, 4, v{vLANE}')
    e(f'v_lshlrev_b32 v{t+5}, 4, v0')
    e(f's_cmp_eq_u32 s{sROLE}, 3')
    e(f's_cselect_b32 s{sT0}, L_tab1-L_tab0, 0')
    e(f's_add_u32 s{sT0}, s{sT0}, L_tab0-L_pc+4096')
    e(f's_add_u32 s96, s{sPC}, s{sT0}')
    e(f's_addc_u32 s97, s{sPC+1}, 0')
    if C.code_touch:
        e(f'v_min_u32 v{t+6}, 7, v{vLANE}')
        e(f'v_lshl_add_u32 v{t+6}, v{t}, 3, v{t+6}')
        e(f's_lshl_b32 s{sT1}, s{sT1}, 5')
        e(f'v_add_u32 v{t+6}, s{sT1}, v{t+6}')
        e(f'v_lshlrev_b32 v{t+6}, 7, v{t+6}')
        e(f'v_min_u32 v{t+6}, L_tabend-L_pc-4, v{t+6}')
        e(f'global_load_dword v{t+7}, v{t+6}, s[{sPC}:{sPC+1}]')
    e(f's_mul_i32 s{sMY}, s{sSG}, 3')
    e(f's_add_u32 s{sMY}, s{sMY}, s{sROLE}')
    e(f's_add_u32 s{sT0}, s{sSG}, 12')
    e(f's_cmp_eq_u32 s{sROLE}, 3')
    e(f's_cselect_b32 s{sMY}, s{sT0}, s{sMY}')
    e(f's_lshl_b32 s{sT0}, s{sTILE}, 2')
    e(f's_add_u32 s{sT0}, s{sT0}, s{sWAVE}')
    e(f's_mul_i32 s{sXOFF}, s{sT0}, {32*1152}')
    e(f's_mul_i32 s{sFLG}, s{sTILE}, 10240')
    e(f's_add_u32 s{sFLG}, s{sFLG}, {WS_FLG}')
    e(f's_mov_b32 s{sONES}, 0x3f803f80')
    e(f's_mov_b32 s{sMASK}, 0xffff0000')
    vA, vC0, vC1, vB = TMP+24, TMP+25, TMP+26, TMP+27
    e(f's_and_b32 s{sT0}, s{sTILE}, 7')
    e(f's_mul_i32 s{sT1}, s{sT0}, 86')
    e(f's_lshr_b32 s{sT1}, s{sT1}, 8')
    e(f's_mul_i32 s{sT1}, s{sT1}, 3')
    e(f's_sub_u32 s{sT1}, s{sT0}, s{sT1}')
    e(f's_mul_i32 s{sT1}, s{sT1}, {3 if C.rot_f else 0}')
    if not C.rot_a: e(f's_mov_b32 s{sT0}, 0')
    e(f's_cmp_eq_u32 s{sROLE}, 3')
    e(f's_cselect_b32 s{sROT}, s{sT0}, s{sT1}')
    e(f's_lshl_b32 s{sT0}, s{sROT}, 3')
    e(f'v_lshrrev_b32 v{t}, 5, v{vLANE}')
    e(f'v_and_b32 v{t+1}, 31, v{vLANE}')
    e(f'v_xor_b32 v{t+1}, v{t+1}, v{t}')
    e(f'v_mul_u32_u24 v{t}, 1152, v{t}')
    e(f'v_add_u32 v{t+1}, s{sT0}, v{t+1}')
    e(f'v_subrev_u32 v{t+2}, 72, v{t+1}')
    e(f'v_min_u32 v{t+2}, v{t+1}, v{t+2}')
    e(f'v_lshl_add_u32 v{vA}, v{t+2}, 4, v{t}')
    e(f'v_add_u32 v{t+1}, 32, v{t+1}')
    e(f'v_subrev_u32 v{t+2}, 72, v{t+1}')
    e(f'v_min_u32 v{t+2}, v{t+1}, v{t+2}')
    e(f'v_lshl_add_u32 v{vB}, v{t+2}, 4, v{t}')
    e(f's_sub_u32 s{sT0}, s{sROT}, 1')
    e(f's_cselect_b32 s{sT0}, 8, s{sT0}')
    e(f's_lshl_b32 s{sT0}, s{sT0}, 7')
    e(f'v_lshrrev_b32 v{t}, 3, v{vLANE}')
    e(f'v_mul_u32_u24 v{t}, 1152, v{t}')
    e(f'v_add_u32 v{t}, s{sT0}, v{t}')
    e(f'v_and_b32 v{t+1}, 7, v{vLANE}')
    e(f'v_lshrrev_b32 v{t+2}, 4, v{vLANE}')
    e(f'v_xor_b32 v{t+1}, v{t+1}, v{t+2}')
    e(f'v_lshl_add_u32 v{vC0}, v{t+1}, 4, v{t}')
    e(f's_and_b32 s{sT0}, s{sROLE}, 1')
    e(f's_lshl_b32 s{sT0}, s{sT0}, 6')
    e(f'v_xor_b32 v{vC0}, s{sT0}, v{vC0}')
    e(f'v_xor_b32 v{vC1}, 64, v{vC0}')
    e(f's_mul_i32 s{sLDSW}, s{sWAVE}, 16896')
    e(f's_lshl_b32 s{sT3}, s{sWAVE}, 12')
    for n in range(4):
        e(f's_add_u32 s{sT0}, s{sROLE}, {n}')
        e(f's_and_b32 s{sT0}, s{sT0}, 3')
        e(f's_mul_i32 s{sT1}, s{sT0}, 9216')
        e(f's_add_u32 s{sQ+n}, s{sXOFF}, s{sT1}')
        e(f's_mul_i32 s{sT1}, s{sT0}, 4224')
        e(f's_add_u32 s{sQ+4+n}, s{sLDSW}, s{sT1}')
        e(f's_lshl_b32 s{sT1}, s{sT0}, 10')
        e(f's_add_u32 s{sQ+8+n}, s{sT3}, s{sT1}')
    e('s_waitcnt lgkmcnt(0)')
    def mksrd(b, p, nbytes): e(f's_mov_b32 s{b}, s{p}\ns_mov_b32 s{b+1}, s{p+1}\ns_mov_b32 s{b+2}, {nbytes}\ns_mov_b32 s{b+3}, 0x20000')
    stamp(e, 'kernarg')
    mksrd(S_X, 64, 2048*576*2)
    def ab(part, n, j):
        imm = 2304*(j & 1)
        so = f's{sQ+n}' if j < 2 else f's{sSOFF}'
        it = [f's_add_u32 m0, s{sQ+4+n}, {XA + part*67584 + 1056*j - imm}']
        it.append(f's_add_u32 s{sSOFF}, s{sQ+n}, 4608' if j == 2 else 's_nop 0')
        it.append(f'buffer_load_dwordx4 v{vB if part else vA}, {srd(S_X)}, {so} offen offset:{imm} lds')
        return it
    def cc(n):
        return [f's_add_u32 m0, s{sQ+8+n}, {XC}', 's_nop 0', f'buffer_load_dwordx4 v{[vC0, vC1][n & 1]}, {srd(S_X)}, s{sQ+n} offen lds']
    own = [ab(0, 0, j) for j in range(4)] + [ab(1, 0, j) for j in range(4)] + [cc(0)]
    restA = [ab(0, n, j) for n in range(1, 4) for j in range(4)]
    restB = [ab(1, n, j) for n in range(1, 4) for j in range(4)] + [cc(n) for n in range(1, 4)]
    if not C.early_first:
        for it in own:
            for x in it: e(x)
        stamp(e, 'own issued')
    for g in range(NLG):
        e(f'global_load_dwordx4 {LG_DST_ATT[g]}, v{vL16}, s[96:97] offset:{1024*g - 4096}')
    for g in range(NTG):
        e('s_add_u32 s96, s96, 4096\ns_addc_u32 s97, s97, 0')
        e(f'global_load_dwordx4 {TG_DST[g]}, v{t+5}, s[96:97]')
    for (b, p, nbytes) in [(S_WQKV, 66, 576*1728*2), (S_WPHI, 68, 32*18*18*2), (S_WO, 70, 576*576*2),
                           (S_W1, 74, 576*4608*2), (S_W2, 76, 576*4608*2), (S_OUT, 78, 2048*576*2), (S_DBG, 80, 256), (S_WS, 82, WS_USED)]:
        mksrd(b, p, nbytes)
    e(f's_and_b32 s{sT0}, s{sTILE}, 3')
    e(f's_mul_i32 s{sT0}, s{sT0}, {3 if C.vrot else 0}')
    e(f's_add_u32 s{sT0}, s{sT0}, s{sMY}')
    e(f's_cmp_ge_u32 s{sT0}, 12')
    e(f's_cselect_b32 s{sT1}, 12, 0')
    e(f's_sub_u32 s72, s{sT0}, s{sT1}')
    e(f's_cmp_eq_u32 s{sROLE}, 3')
    e(f's_cselect_b32 s72, s{sMY}, s72')
    z = TMP + 12
    for i in range(4): e(f'v_mov_b32 v{z+i}, 0')
    e(f's_mul_i32 s{sT0}, s{sWAVE}, 2560')
    e(f's_add_u32 s{sT0}, s{sT0}, s{sFLG}')
    e(f's_lshl_b32 s{sRDY}, s{sTILE}, 4')
    e(f's_cmp_eq_u32 s72, 11')
    e(f's_cselect_b32 s{sT0}, s{sT0}, {OOB}')
    e(f's_cselect_b32 s{sRDY}, s{sRDY}, {OOB}')
    for o_ in (0, 1024, 1536):
        e(f'buffer_store_dwordx4 v[{z}:{z+3}], v{vL16}, {srd(S_WS)}, s{sT0} offen offset:{o_} sc1')
    e(f's_cmp_eq_u32 s{sWAVE}, 0')
    e(f's_cselect_b32 s{sRDY}, s{sRDY}, {OOB}')
    e(f's_lshl_b32 s{sT0}, s{sWAVE}, 11')
    e(f's_add_u32 s{sFLG}, s{sFLG}, s{sT0}')
    e(f's_lshl_b32 s{sT0}, s72, 7')
    e(f's_add_u32 s{sA1}, s{sFLG}, s{sT0}')
    early(e)
    if C.early_first:
        for it in own:
            for x in it: e(x)
        stamp(e, 'own issued')
    be, bo, bc = XAD, XAD+1, XAD+2
    e(f'v_bfe_u32 v{t}, v{vLANE}, 1, 4')
    e(f'v_mul_u32_u24 v{t+1}, 1056, v{t}')
    e(f'v_and_b32 v{t+2}, 1, v{vLANE}')
    e(f'v_lshl_add_u32 v{t+1}, v{t+2}, 9, v{t+1}')
    e(f'v_lshrrev_b32 v{t+3}, 5, v{vLANE}')
    e(f'v_lshl_add_u32 v{t+1}, v{t+3}, 6, v{t+1}')
    e(f'v_add_u32 v{t+1}, s{sLDSW}, v{t+1}')
    e(f'v_lshlrev_b32 v{t+2}, 4, v{t+2}')
    e(f'v_add_u32 v{be}, v{t+1}, v{t+2}')
    e(f'v_sub_u32 v{bo}, v{t+1}, v{t+2}')
    e(f'v_add_u32 v{be+6}, 67584, v{be}')
    e(f'v_add_u32 v{bo+6}, 67584, v{bo}')
    e(f'v_and_b32 v{t}, 7, v{t}')
    e(f'v_lshlrev_b32 v{t+3}, 2, v{t+3}')
    e(f'v_xor_b32 v{t}, v{t}, v{t+3}')
    e(f'v_and_b32 v{t+1}, 31, v{vLANE}')
    e(f'v_lshlrev_b32 v{t+1}, 7, v{t+1}')
    e(f'v_lshl_add_u32 v{t+1}, v{t}, 4, v{t+1}')
    e(f'v_add_u32 v{t+1}, {XC}, v{t+1}')
    e(f'v_add_u32 v{bc}, s{sT3}, v{t+1}')
    for v in range(1, 4): e(f'v_xor_b32 v{bc+v}, {16*v}, v{bc}')
    s1 = [LNS, LNS+1]; s2 = [LNS+2, LNS+3]
    for r in s1 + s2: e(f'v_mov_b32 v{r}, 0')
    for it in restA:
        for x in it: e(x)
    tokA = e.vm_tok()
    stamp(e, 'restA issued')
    NB = C.nb_pre
    for it in restB[:NB]:
        for x in it: e(x)
    lt = {}
    def rd(ks):
        p, v = divmod(ks, 4)
        if p < 8:
            e(f'ds_read_b128 {X(ks)}, v{(bo if v & 1 else be) + 6*(p >> 2)} offset:{XA + 128*(p & 3) + 16*v}')
        else:
            e(f'ds_read_b128 {X(ks)}, v{bc+v}')
        lt[ks] = e.lg_tok()
    def p1(ks):
        e.wait(lg=lt[ks])
        for i in range(4):
            r = X0 + 4*ks + i
            e(f'v_dot2c_f32_bf16 v{s1[i%2]}, s{sONES}, v{r}')
            e(f'v_dot2c_f32_bf16 v{s2[i%2]}, v{r}, v{r}')
    e.wait(vm=tokA)
    stamp(e, 'xA landed')
    rb = restB[NB:]
    for ks in range(16):
        rd(ks)
        if ks % 4 == 3 and rb:
            for x in rb.pop(0): e(x)
    for ks in range(16):
        if rb:
            for x in rb.pop(0): e(x)
        p1(ks)
    assert not rb
    tokB = e.vm_tok()
    return dict(tokB=tokB, rd=rd, p1=p1)

TAILCODE = []
def poll_check(e, load_text, vdst, tok, need, stmp):
    n = _lbl[0]; _lbl[0] += 1
    e.wait(vm=tok)
    e(f'v_readfirstlane_b32 s{stmp}, v{vdst}')
    e(f's_cmp_ge_u32 s{stmp}, {need}')
    e(f's_cbranch_scc0 L_sp{n}')
    e(f'L_ok{n}:')
    TAILCODE.append(f'L_sp{n}:\ns_sleep 1\n{load_text}\ns_waitcnt vmcnt(0)\nv_readfirstlane_b32 s{stmp}, v{vdst}\ns_nop 1\ns_cmp_ge_u32 s{stmp}, {need}\ns_cbranch_scc0 L_sp{n}\ns_branch L_ok{n}')

def poll_check_all(e, load_text, vdst, tok, stmp):
    n = _lbl[0]; _lbl[0] += 1
    e.wait(vm=tok)
    e(f'v_cmp_ne_u32 vcc, 0, v{vdst}')
    e(f's_cmp_eq_u64 vcc, -1')
    e(f's_cbranch_scc0 L_sp{n}')
    e(f'L_ok{n}:')
    TAILCODE.append(f'L_sp{n}:\ns_sleep 2\n{load_text}\ns_waitcnt vmcnt(0)\nv_cmp_ne_u32 vcc, 0, v{vdst}\ns_nop 1\ns_cmp_eq_u64 vcc, -1\ns_cbranch_scc0 L_sp{n}\ns_branch L_ok{n}')

def ln_finish(e, xs, ring, touches=(), maxpump=99):
    left = [maxpump]
    def pump():
        if left[0] > 0: ring.pump(1); left[0] -= 1
    e.wait(vm=xs['tokB'])
    stamp(e, 'x all landed')
    for ks in range(16, 36): xs['rd'](ks)
    for ks in range(16, 36):
        if ks % 2: pump()
        xs['p1'](ks)
    s1 = [LNS, LNS+1]; s2 = [LNS+2, LNS+3]
    a, b, c, d = LNS+4, LNS+5, LNS+6, LNS+7
    e(f'v_add_f32 v{a}, v{s1[0]}, v{s1[1]}')
    e(f'v_add_f32 v{c}, v{s2[0]}, v{s2[1]}')
    e(f'v_mov_b32 v{b}, v{a}')
    e(f'v_mov_b32 v{d}, v{c}')
    pump()
    e(f'v_permlane32_swap_b32 v{a}, v{b}')
    e(f'v_permlane32_swap_b32 v{c}, v{d}')
    e(f'v_add_f32 v{a}, v{a}, v{b}')
    e(f'v_add_f32 v{c}, v{c}, v{d}')
    e(f'v_mul_f32 v{a}, {f32(1.0/576)}, v{a}')
    e(f'v_mul_f32 v{c}, {f32(1.0/576)}, v{c}')
    e(f'v_fma_f32 v{c}, -v{a}, v{a}, v{c}')
    e(f'v_max_f32 v{c}, 0, v{c}')
    bf16_round(e, b, a)
    bf16_round(e, c, c)
    e(f'v_add_f32 v{c}, {f32(1e-5)}, v{c}')
    bf16_round(e, c, c)
    e(f'v_sqrt_f32 v{c}, v{c}')
    bf16_round(e, c, c)
    e(f'v_rcp_f32 v{c}, v{c}')
    pump()
    e(f'v_mul_f32 v{LNC}, {f32(LOG2E)}, v{c}')
    e(f'v_mul_f32 v{LNC+1}, -v{b}, v{LNC}')
    ring.pump(C.pre_touch_pump)
    for x in touches: e(x)
    stamp(e, 'stats done')

def norm_ops(ks, T, pk=False):
    Cc, NB = LNC, LNC + 1
    ops = []
    for i in range(4):
        r = X0 + 4*ks + i
        ops.append(f'v_lshlrev_b32 v{T+2*i}, 16, v{r}')
        ops.append(f'v_and_b32 v{T+2*i+1}, s{sMASK}, v{r}')
    if pk:
        for i in range(4):
            ops.append(f'v_pk_fma_f32 v[{T+2*i}:{T+2*i+1}], v[{T+2*i}:{T+2*i+1}], v[{Cc}:{Cc+1}], v[{Cc}:{Cc+1}] op_sel:[0,0,1] op_sel_hi:[1,0,1]')
    else:
        for i in range(8):
            ops.append(f'v_fma_f32 v{T+i}, v{T+i}, v{Cc}, v{NB}')
    for i in range(4):
        ops.append(f'v_cvt_pk_bf16_f32 v{X0+4*ks+i}, v{T+2*i}, v{T+2*i+1}')
    return ops

def add_norm(gap, per_ks, T, lead=2, ring=None):
    pre = []
    for ks in range(lead):
        pre += norm_ops(ks, T, pk=True)
        if ring is not None and ks % 2 == 1: pre.append(lambda: ring.pump(1))
    n = 36 - lead
    for i, ks in enumerate(range(lead, 36)):
        g0 = int(i * (35 * per_ks - 2) / n); g1 = int((i + 1) * (35 * per_ks - 2) / n)
        assert g1 <= ks * per_ks - 1 or True
        g1 = min(g1, ks * per_ks - 1); g0 = min(g0, g1 - 1)
        spread(gap, norm_ops(ks, T), g0, g1)
    return pre

def code_touch_op(label, dst, vtmp):
    return [f'v_lshlrev_b32 v{vtmp}, 7, v{vLANE}', f'v_add_u32 v{vtmp}, {label}-L_pc, v{vtmp}', f'v_min_u32 v{vtmp}, L_tabend-L_pc-4, v{vtmp}',
            f'global_load_dword v{dst}, v{vtmp}, s[{sPC}:{sPC+1}]']

def jit_touch(e, vaddr, vdst):
    def f():
        n = _lbl[0]; _lbl[0] += 1
        e(f'L_ct{n}:')
        e(f's_add_u32 s100, s{sPC}, L_ct{n}-L_pc+{C.ct_ahead}')
        e(f's_addc_u32 s101, s{sPC+1}, 0')
        e(f'global_load_dword v{vdst}, v{vaddr}, s[100:101]')
    return (C.ct_every, f) if C.ct_every else None
```

```python
from common import *
from common import _stamp_n, _lbl, _ident

PHI = 88064; PHP = 592
VB = 0; VP = 336
MIMG = 126976
FL = 143360
def _kvoff(i):
    def f(l):
        L = 64*i + l; row, cc = divmod(L, 36)
        sc = 2*(cc >> 2) + (cc & 1)
        return row*3456 + 1152*(1 + (sc >= 9)) + 144*((cc >> 1) & 1) + 16*(sc % 9) - 1024*(i % 4)
    return f
def _qoff(i):
    def f(l):
        L = 64*i + l; row, cc = divmod(L, 20)
        sc = min(2*(cc >> 2) + (cc & 1), 8)
        return row*3456 + 144*((cc >> 1) & 1) + 16*sc - (1024*i if i < 4 else 0)
    return f
def _wdst(i):
    def f(w, l):
        idx = 64*w + l + 256*i
        if idx > 1295: return MIMG + 34560 + 4*l
        R = idx // 9
        return MIMG + 4*idx + 124*R + 36*((R // 18) & 3)
    return f
_tk = lane_fn(32*576, 576, 32, 16, 8)
TAB.lane[1] = [
    [_kvoff(0), _kvoff(1), _kvoff(2), _kvoff(3)], [_kvoff(4), _kvoff(5), _kvoff(6), _kvoff(7)],
    [_kvoff(8), _tk, lambda l: _tk(l) + 65536, lambda l: _tk(l) + 131072],
    [_qoff(0), _qoff(1), _qoff(2), _qoff(3)],
    [_qoff(4), lane_fn(32*320, 320, 32, 16, 8),
     lambda l: MIMG + lane_fn(0, 160, 0, 16, 8)(l) + (11520*(l >> 5) if (l & 1) == (l >> 5) else 23040),
     lambda l: PHI + (l & 31)*PHP + 288*(l >> 5)],
    [lane_fn(2*PHP, 4*PHP, 16, 32, 8, K=PHI), lane_fn(2*PHP, 4*PHP, 0, 0, 72, K=PHI + 64),
     lambda l: VB + lane_fn(2*VP, 4*VP, 0, 0, 0)(l) + 8*min(4*((l >> 4) & 1) + (l & 3), 4),
     lambda l: FL + 16384 + 8*l + 4*(l >> 5)],
    [lambda l: FL + 16*l, lambda l: (l & 15)*10240, lambda l: 16*(l & 15), lambda l: 0],
    [lambda l: VB + (l & 31)*VP + 160*(l >> 5), lambda l: (min(l, 53) // 3)*3456 + (0, 140, 284)[min(l, 53) % 3],
     lambda l: (16*(20*(l >> 5) + ((l & 31) if (l & 31) < 18 else (l & 31) - 2)) if ((l & 31) < 18 or (l & 31) in (20, 21)) else OOB),
     lambda l: (16*(20*(l >> 5) + (l & 31)) if (l & 31) < 20 else OOB)],
]
def _f2(w, l):
    j = min(l, 9); p = 5*w + j // 2
    u = 5*(p // 2) + 2*(p & 1) + (j & 1) if p < 16 else 5*(2*(p - 16) + (j & 1)) + 4
    return (u & 15)*10240 + (u >> 4)*128
TAB.lane[1] = TAB.lane[1][:5] + [[_ident(0), _ident(1), _ident(2), _ident(3)], [_ident(4), _ident(5), _ident(6), _ident(7)], TAB.lane[1][7], TAB.lane[1][5], TAB.lane[1][6]]
TAB.thr[1] = [[_wdst(0), _wdst(1), _wdst(2), _wdst(3)], [_wdst(4), _wdst(5), lambda w, l: MIMG + 1024*w + 16*l, lambda w, l: MIMG + min(1024*w + 16*l, 111*16)], [_f2, lambda w, l: 0, lambda w, l: 0, lambda w, l: 0]]

def attn_path(e, xs):
    sMYF = sA1
    sP1 = sA0
    vQ = [2, 3, 4, 5, 6]
    vK = list(range(2, 11))
    vT = [11, 12, 13]
    FR = 0; WPH = 48; KP = 132; VA = 168
    e(f's_mul_i32 s{sB1}, s{sWAVE}, {16*3456}')
    e(f's_mul_i32 s{sT0}, s{sSG}, 288')
    e(f's_add_u32 s{sB1}, s{sB1}, s{sT0}')
    e(f's_mul_i32 s{sLDSW}, s{sWAVE}, 9216')
    sLQ = 73
    e(f's_mul_i32 s{sT0}, s{sROT}, {64*3456}')
    for k in range(9):
        e(f's_add_u32 s{sQ+k}, s{sB1}, s{sT0}')
        if k < 8:
            e(f's_add_u32 s{sT0}, s{sT0}, {64*3456}')
            e(f's_cmp_ge_u32 s{sT0}, {576*3456}')
            e(f's_cselect_b32 s{sT0}, 0, s{sT0}')
    ring = Ring(e)
    def kv_stage(addr, kb):
        items = []
        for i in range(9):
            it = []
            if i % 4 == 0:
                it.append(f's_add_u32 m0, s{sLDSW}, {addr + 1024*i}')
                it.append('s_nop 0')
            it.append(f'buffer_load_dwordx4 v{vK[i]}, {srd(S_WQKV)}, s{sQ+kb} offen offset:{1024*(i % 4)} lds')
            items.append(it)
        return Stage(addr, 36864, items, f'kv kb{kb}')
    def q_stage(addr, kb):
        items = []
        for i in range(5):
            it = []
            if i % 4 == 0:
                it.append(f's_add_u32 m0, s{sLQ}, {addr + 1024*i}')
                it.append('s_nop 0')
            it.append(f'buffer_load_dwordx4 v{vQ[i]}, {srd(S_WQKV)}, s{sQ+kb} offen offset:{1024*(i % 4)} lds')
            items.append(it)
        return Stage(addr, 20480, items, f'q kb{kb}')
    kslot = [0, 1, 2, 0, 1, 3, 2, 0, 1] if C.kslot else [0, 1, 2, 0, 1, 2, 3, 0, 1]
    kst = [ring.add(kv_stage(kslot[kb] * 36864, kb)) for kb in range(9)]
    qslots = [43008, 63488, 83968, 104448, 0, 20480]
    qst = []
    ring.reserved = [(XA + 67584, XEND)]
    ring.maxahead = 5
    ring.barrier()
    stamp(e, 'barrier1')
    ring.pump(3)
    ln_finish(e, xs, ring, maxpump=C.a_maxpump)
    ring.reserved = [(MIMG, 163840)]
    st_ = {}
    gap = defaultdict(list)
    center_block(e, range(18), [ACC0 + 16, ACC0 + 32, ACC0 + 48], fill=xs['rest'], ring=ring)
    stamp(e, 'centered')
    pre = []
    spread(gap, [f'v_accvgpr_mov_b32 a{232+i}, a{156+i}' for i in range(8)], 126, 140)
    W = TMP + 24
    def wld():
        e(f's_mul_i32 s{sT0}, s{sSG}, {8*648}')
        e(f's_add_u32 s{sT1}, s{sT0}, 4096')
        e(f'v_lshlrev_b32 v15, 2, v0')
        for i in range(6):
            e(f'buffer_load_dword a{240+i}, v15, {srd(S_WPHI)}, s{sT0 if i < 4 else sT1} offen offset:{1024*(i % 4)}')
        st_['wl'] = e.vm_tok()
    gap[C.wl_at].append(wld)
    z = [f'v_mov_b32 v{W+i}, 0' for i in range(4)] + [f'v_accvgpr_read_b32 v{W+4}, a150', f'v_accvgpr_read_b32 v{W+5}, a151']
    for i in range(9): z.append(f'ds_write_b128 v{W+4 if i < 8 else W+5}, v[{W}:{W+3}] offset:{4096*i}')
    spread(gap, z, 0, 12)
    sc = [(lambda: e.wait(vm=st_['wl']), 4)]
    for i in range(6):
        sc += [f'v_accvgpr_read_b32 v{W+(i%2)}, a{144+i}', f'ds_write_b32 v{W+(i%2)}, a{240+i}']
    vM = W + 3
    sc.append(f'v_accvgpr_read_b32 v{vM}, a138')
    spread(gap, sc, 44, 54)
    pairs = [(T, s) for T, ss in enumerate([range(0, 3), range(0, 5), range(2, 7), range(4, 9), range(6, 9)]) for s in ss]
    rdw = []
    for n, (T, s) in enumerate(pairs):
        for rd in range(2):
            rdw.append(f'ds_read_b64_tr_b16 a[{WPH+4*n+2*rd}:{WPH+4*n+2*rd+1}], v{vM} offset:{(8*s+4*rd)*160 + 32*T}')
    for i, x in enumerate(rdw): gap[66 + i].insert(0, x)
    def rel(): ring.reserved = []
    gap[124].append(rel)
    rl = f'buffer_load_dword v{W+1}, v{W}, {srd(S_DBG)}, 0 offen sc1'
    def rdy1():
        e(f'v_accvgpr_read_b32 v{W}, a238')
        e('s_nop 0')
        e(rl); st_['zp'] = e.vm_tok()
    if C.qtouch:
        gap[218] += [f's_and_b32 s{sT0}, s{sTILE}, 7', f's_lshl_b32 s{sT0}, s{sT0}, 2', f's_add_u32 s{sT0}, s{sT0}, s{sWAVE}', f's_mul_i32 s{sT0}, s{sT0}, {18*3456}',
                     f's_mul_i32 s{sT1}, s{sSG}, 288', f's_add_u32 s{sT0}, s{sT0}, s{sT1}', f'v_accvgpr_read_b32 v{W+4}, a141', 's_nop 0',
                     f'buffer_load_dword v{W+5}, v{W+4}, {srd(S_WQKV)}, s{sT0} offen']
    gap[170].append(rdy1)
    gap[240].append(lambda: poll_check_all(e, rl, W+1, st_['zp'], sT1))
    vPW, vVW, vONE = 7, 8, 9
    qo = [f'v_accvgpr_read_b32 v{vQ[i]}, a{132+i}' for i in range(5)]
    qo += [f'v_accvgpr_read_b32 v10, a142', f'v_accvgpr_read_b32 v{W+2}, a143', f'v_accvgpr_write_b32 a252, v{W+2}']
    qo += [f'v_accvgpr_read_b32 v{W}, a152', f'v_accvgpr_write_b32 a239, v{W}']
    qo += [f'v_accvgpr_read_b32 v{vPW}, a139', f'v_accvgpr_read_b32 v{vVW}, a140', f'v_accvgpr_read_b32 v15, a137',
           (f's_mul_i32 s{sT0}, s{sWAVE}, {32*PHP}\nv_add_u32 v{vPW}, s{sT0}, v{vPW}', 8),
           (f's_mul_i32 s{sT0}, s{sWAVE}, {32*VP}\nv_add_u32 v{vVW}, s{sT0}, v{vVW}', 8), f'v_mov_b32 v{vONE}, v{LNC+1}', f'v_mov_b32 v0, v{LNC}',
           f's_mul_i32 s{sLQ}, s{sWAVE}, 5120', f's_mul_i32 s{sP1}, s{sSG}, {40*16384}', f's_add_u32 s{sP1}, s{sP1}, {WS_P1}']
    spread(gap, qo, 290, 320)
    mf = []
    for ks in range(36):
        kb, v = divmod(ks, 4)
        st = kst[kb]
        for T in range(9):
            off = ring.stages[st].addr + 8*v*576 + 64*T
            acc = f'v[{ACC0+16*T}:{ACC0+16*T+15}]' if T < 5 else f'a[{VA+16*(T-5)}:{VA+16*(T-5)+15}]'
            mf.append(dict(stage=st, reads=tr_reads(vT, off, 4*576), b=X(ks), acc=acc, first=(ks == 0)))
    if C.slotstamps:
        for g_ in (): gap[g_].append(lambda g_=g_: stamp(e, f'kv gap {g_}'))
    run_stream(e, ring, mf, gap, FR, pre=pre, pre_first=True, dma_max_gap=C.kv_dma_gap)
    stamp(e, 'KV gemm')
    e(f'v_mov_b32 v{vT[0]}, v15')
    e(f'v_add_u32 v{vT[1]}, 65536, v15')
    e(f'v_add_u32 v{vT[2]}, 131072, v15')
    for kb in range(9): qst.append(ring.add(q_stage(qslots[kb % 6], kb)))

    def pack_proj(fill=()):
        fill = list(fill)
        for i in range(36):
            e(f'v_cvt_pk_bf16_f32 v{TMP+16+(i%4)}, v{ACC0+2*i}, v{ACC0+2*i+1}')
            e(f'v_accvgpr_write_b32 a{KP+i}, v{TMP+16+(i%4)}')
            if i % 6 == 5: ring.pump(1)
        seen = set()
        for n, (T, s) in enumerate(pairs):
            d = f'v[{ACC0+16*T}:{ACC0+16*T+15}]'
            e(f'v_mfma_f32_32x32x16_bf16 {d}, a[{WPH+4*n}:{WPH+4*n+3}], a[{KP+4*s}:{KP+4*s+3}], {d if T in seen else 0}')
            seen.add(T)
            for _ in range(5):
                if fill:
                    x = fill.pop(0); x() if callable(x) else e(x)
        for x in fill: x() if callable(x) else e(x)

    def softmax_ops(a, T1, S, kside=False):
        p = ACC0 + 18*a
        ops = []
        mx, mn = S, S+2
        ops.append(f'v_max3_f32 v{mx}, v{p}, v{p+1}, v{p+2}')
        ops.append(f'v_min3_f32 v{mn}, v{p}, v{p+1}, v{p+2}')
        for i in range(3, 17, 2):
            ops.append(f'v_max3_f32 v{mx}, v{mx}, v{p+i}, v{p+i+1}')
            ops.append(f'v_min3_f32 v{mn}, v{mn}, v{p+i}, v{p+i+1}')
        ops.append(f'v_max_f32 v{mx}, v{mx}, v{p+17}')
        ops.append(f'v_min_f32 v{mn}, v{mn}, v{p+17}')
        ops.append(f'v_mul_f32 v{mx}, v0, v{mx}')
        ops.append(f'v_mul_f32 v{mn}, v0, v{mn}')
        for i in range(0, 18, 2):
            ops.append(f'v_pk_fma_f32 v[{T1+i}:{T1+i+1}], v[{p+i}:{p+i+1}], v[0:1], v[{mx}:{mx+1}] op_sel_hi:[1,0,0] neg_lo:[0,0,1] neg_hi:[0,0,1]')
            ops.append(f'v_pk_fma_f32 v[{p+i}:{p+i+1}], v[{p+i}:{p+i+1}], v[0:1], v[{mn}:{mn+1}] op_sel_hi:[1,0,0] neg_lo:[1,0,0] neg_hi:[1,0,0]')
        for i in range(18):
            ops.append(f'v_exp_f32 v{T1+i}, v{T1+i}')
            ops.append(f'v_exp_f32 v{p+i}, v{p+i}')
        ops.append(f'v_pk_add_f32 v[{mx}:{mx+1}], v[{T1}:{T1+1}], v[{T1+2}:{T1+3}]')
        ops.append(f'v_pk_add_f32 v[{mn}:{mn+1}], v[{p}:{p+1}], v[{p+2}:{p+3}]')
        for i in range(4, 18, 2):
            ops.append(f'v_pk_add_f32 v[{mx}:{mx+1}], v[{mx}:{mx+1}], v[{T1+i}:{T1+i+1}]')
            ops.append(f'v_pk_add_f32 v[{mn}:{mn+1}], v[{mn}:{mn+1}], v[{p+i}:{p+i+1}]')
        ops.append(f'v_add_f32 v{mx}, v{mx}, v{mx+1}')
        ops.append(f'v_add_f32 v{mn}, v{mn}, v{mn+1}')
        ops.append(f'v_rcp_f32 v{mx}, v{mx}')
        ops.append(f'v_rcp_f32 v{mn}, v{mn}')
        ops.append('s_nop 0')
        if kside:
            ops.append(f'v_mul_f32 v{mx}, v0, v{mx}')
            ops.append(f'v_mul_f32 v{mn}, v0, v{mn}')
        for i in range(0, 18, 2):
            ops.append(f'v_pk_mul_f32 v[{T1+i}:{T1+i+1}], v[{T1+i}:{T1+i+1}], v[{mx}:{mx+1}] op_sel_hi:[1,0]')
            ops.append(f'v_pk_mul_f32 v[{p+i}:{p+i+1}], v[{p+i}:{p+i+1}], v[{mn}:{mn+1}] op_sel_hi:[1,0]')
        return ops, p

    T1 = ACC0 + 72; S = ACC0 + 90
    for i in range(8): e(f'v_accvgpr_write_b32 a{244+i}, v{ACC0+72+i}')
    def va(idx): return 244 + idx if idx < 8 else VA + idx - 8
    ring.reserved = [(PHI, 163840), (VB, VB + 128*VP)]
    ring.barrier()
    vw = []
    B = TMP + 20
    prs = [(0,1),(2,3),(9,10),(11,12),(4,5),(6,7),(13,14),(15,16),(8,None),(17,None)]
    for n in range(40):
        a, m = divmod(n, 10); pr = prs[m]
        d = B + n % 12
        r0 = TMP + 16 + (2*n) % 4
        vw.append(f'v_accvgpr_read_b32 v{r0}, a{va(18*a+pr[0])}')
        if pr[1] is not None: vw.append(f'v_accvgpr_read_b32 v{r0+1}, a{va(18*a+pr[1])}')
        vw.append(f'v_cvt_pk_bf16_f32 v{d}, v{r0}, v{r0+1 if pr[1] is not None else vONE}')
        if n % 12 == 11 or n == 39:
            n0 = n - n % 12
            for i in range((n - n0 + 1) // 4): vw.append(f'ds_write_b128 v{vVW}, v[{B+4*i}:{B+4*i+3}] offset:{4*n0 + 16*i}')
    pack_proj(vw)
    stamp(e, 'proj k + v')
    for a in range(4):
        o, p = softmax_ops(a, T1, S, True)
        for i_, x in enumerate(o):
            e(x)
            if i_ % 40 == 20: ring.pump(1)
        for m in range(9): e(f'v_cvt_pk_bf16_f32 v{p+m}, v{p+2*m}, v{p+2*m+1}')
        for m in range(9): e(f'v_cvt_pk_bf16_f32 v{p+9+m}, v{T1+2*m}, v{T1+2*m+1}')
        if a % 2 == 1:
            q0 = p - 18
            for i in range(9): e(f'ds_write_b128 v{vPW}, v[{q0+4*i}:{q0+4*i+3}] offset:{72*(a-1) + 16*i}')
    stamp(e, 'softmax k')
    vA0, vA1, vL0, vL1, vB0 = TMP+16, TMP+17, TMP+18, TMP+19, TMP+20
    e(f's_mul_i32 s{sT0}, s{sWAVE}, 144')
    e(f's_mul_i32 s{sT1}, s{sWAVE}, 80')
    e(f'v_accvgpr_read_b32 v{vA0}, a232\nv_accvgpr_read_b32 v{vL0}, a233\nv_accvgpr_read_b32 v{vB0}, a234')
    e(f'v_add_u32 v{vA0}, s{sT0}, v{vA0}\nv_add_u32 v{vL0}, s{sT0}, v{vL0}\nv_add_u32 v{vB0}, s{sT1}, v{vB0}')
    e(f'v_add_u32 v{vA1}, {64*PHP}, v{vA0}\nv_add_u32 v{vL1}, {64*PHP}, v{vL0}\nv_accvgpr_read_b32 v9, a252')
    ring.barrier(lg=True)
    stamp(e, 'phi visible')
    OPB = [0, 20, 208]
    KVD = [[132, 168], [148, 184]]
    toks = {}
    def kv_reads(s):
        o = OPB[s % 3]
        hi = s >= 4
        for rd in range(2):
            for h in range(2):
                e(f'ds_read_b64_tr_b16 a[{o+4*h+2*rd}:{o+4*h+2*rd+1}], v{vB0} offset:{(16*s+rd)*VP + 40*h}')
                e(f'ds_read_b64_tr_b16 a[{o+8+4*h+2*rd}:{o+8+4*h+2*rd+1}], v{vA1 if hi else vA0} offset:{(16*(s%4)+rd)*PHP + 72*h}')
            e(f'ds_read_b64_tr_b16 a[{o+16+2*rd}:{o+16+2*rd+1}], v{vL1 if hi else vL0} offset:{(16*(s%4)+rd)*PHP}')
        toks[s] = e.lg_tok()
    kv_reads(0); kv_reads(1)
    for s in range(8):
        e.wait(lg=toks[s])
        if s == 7:
            ring.reserved = []
            ring.barrier()
        o = OPB[s % 3]
        for h in range(2):
            for part in range(2):
                d = KVD[h][part]
                a = o + 8 + 4*h if part == 0 else o + 16
                e(f'v_mfma_f32_32x32x16_bf16 a[{d}:{d+15}], a[{a}:{a+3}], a[{o+4*h}:{o+4*h+3}], {0 if s == 0 else f"a[{d}:{d+15}]"}')
                if s == 7: ring.pump(1)
            if h == 0 and s + 2 < 8: kv_reads(s + 2)
    stamp(e, 'kv mfma')

    gap = defaultdict(list)
    w = TMP + 16
    vZ, vPL, vL4, vFS = w + 2, w + 3, w + 1, w + 12
    RBq = [132 + 4*i for i in range(8)] + [168 + 4*i for i in range(8)]
    RS = w + 4
    vM16 = 10
    sC1, sC2, sU, sPS = 95, 96, 97, 74
    gap[0] += [f's_mul_i32 s{sPS}, s{sWAVE}, {10*16384}', f's_add_u32 s{sPS}, s{sPS}, s{sP1}', f's_lshl_b32 s{sT1}, s{sTILE}, 10', f's_add_u32 s{sPS}, s{sPS}, s{sT1}']
    gap[1] += [f'v_mov_b32 v{vZ}, 0', f'v_mov_b32 v{w}, 1', f'v_accvgpr_read_b32 v{vL4}, a237', f's_lshl_b32 s{sC1}, s{sSG}, 9', f's_add_u32 s{sC1}, s{sC1}, {WS_FLG + 8192}']
    gap[2] += [f's_mul_i32 s{sC2}, s{sTILE}, 10240', f's_add_u32 s{sC2}, s{sC2}, s{sC1}', f's_lshl_b32 s{sT0}, s{sWAVE}, 7', f's_add_u32 s{sC2}, s{sC2}, s{sT0}']
    gap[3] += [f's_lshl_b32 s{sU}, s{sWAVE}, 4', f's_add_u32 s{sU}, s{sU}, s{sTILE}', f's_min_u32 s{sT0}, s{sU}, 39', f's_mul_i32 s{sT0}, s{sT0}, 26', f's_lshr_b32 s{sT0}, s{sT0}, 8',
               f's_lshl_b32 s{sT0}, s{sT0}, 7', f's_add_u32 s75, s{sC1}, s{sT0}']
    g_ = C.p1_at
    for h in range(2):
        for k in range(5):
            r = KVD[h][0] + 4*k if k < 4 else KVD[h][1] + 4*h
            gap[g_].append(f'buffer_store_dwordx4 a[{r}:{r+3}], v9, {srd(S_WS)}, s{sPS} offen sc1\ns_add_u32 s{sPS}, s{sPS}, 16384')
            g_ += 1
    gap[g_ - 1].append(lambda: st_.__setitem__('p1', e.vm_tok()))
    def sig1():
        e.wait(vm=st_['p1'])
        e(f'buffer_store_dword v{w}, v{vZ}, {srd(S_WS)}, s{sC2} offen sc1')
    gap[C.rs_sig1].append(sig1)
    ld1 = f'buffer_load_dword v{vPL}, v{vL4}, {srd(S_WS)}, s75 offen sc1'
    def pl1(): e(ld1); st_['p'] = e.vm_tok()
    gap[C.rs_poll1].append(pl1)
    def chk1():
        poll_check_all(e, ld1, vPL, st_['p'], sT1)
        e(f's_lshl_b32 s{sT3}, s{sU}, 14')
        e(f's_add_u32 s{sT3}, s{sT3}, s{sP1}')
        e(f's_cmp_lt_u32 s{sU}, 40')
        e(f's_cselect_b32 s{sT3}, s{sT3}, {OOB}')
    c1 = C.rs_poll1 + C.rs_pd
    gap[c1].append(chk1)
    for i in range(16):
        gg = c1 + 1 + i // 2
        if i and i % 4 == 0: gap[gg].append(f's_add_u32 s{sT3}, s{sT3}, 4096')
        gap[gg].append(f'buffer_load_dwordx4 a[{RBq[i]}:{RBq[i]+3}], v{vM16}, {srd(S_WS)}, s{sT3} offen offset:{1024*(i%4)} sc1')
        gap[gg].append(lambda i=i: st_.__setitem__(('r', i), e.vm_tok()))
    fa = [f's_mul_i32 s{sT0}, s{sU}, 52', f's_lshr_b32 s{sT0}, s{sT0}, 8', f's_mul_i32 s{sT1}, s{sT0}, 5', f's_sub_u32 s{sT1}, s{sU}, s{sT1}',
          f's_lshl_b32 s{sPS}, s{sT0}, 11', f's_lshr_b32 s{sT2}, s{sT1}, 1', f's_lshl_b32 s{sT2}, s{sT2}, 10', f's_add_u32 s{sPS}, s{sPS}, s{sT2}',
          f's_and_b32 s{sT2}, s{sT1}, 1', f's_lshl_b32 s{sT2}, s{sT2}, 3', f's_add_u32 s{sPS}, s{sPS}, s{sT2}',
          f's_lshl_b32 s{sT0}, s{sT0}, 9', f's_add_u32 s{sT0}, s{sT0}, 16384',
          f's_cmp_eq_u32 s{sT1}, 4', f's_cselect_b32 s{sPS}, s{sT0}, s{sPS}', f's_cselect_b32 s{sT1}, 3, 4',
          f'v_lshlrev_b32 v{vFS}, s{sT1}, v{vLANE}',
          f's_mul_i32 s{sB2}, s{sSG}, 20480', f's_add_u32 s{sB2}, s{sB2}, {WS_F}', f's_add_u32 s{sPS}, s{sPS}, s{sB2}', f's_cmp_lt_u32 s{sU}, 40', f's_cselect_b32 s{sPS}, s{sPS}, {OOB}']
    gap[c1 + 12].append('\n'.join(fa))
    sm = []
    for i in range(16):
        if i % 4 == 0: sm.append((lambda i=i: e.wait(vm=st_['r', i + 3]), 4))
        for k in range(4):
            sm.append(f'v_accvgpr_read_b32 v{RS + (k if i == 0 else 4 + k)}, a{RBq[i]+k}')
        if i:
            for k in range(4): sm.append(f'v_add_f32 v{RS+k}, v{RS+k}, v{RS+4+k}')
    sm += [f'v_cvt_pk_bf16_f32 v{RS+4}, v{RS}, v{RS+1}', f'v_cvt_pk_bf16_f32 v{RS+5}, v{RS+2}, v{RS+3}',
           f'buffer_store_dwordx2 v[{RS+4}:{RS+5}], v{vFS}, {srd(S_WS)}, s{sPS} offen sc1',
           (lambda: st_.__setitem__('f', e.vm_tok()), 0)]
    s0 = c1 + C.rs_ld
    spread(gap, sm, s0, s0 + C.rs_sum)
    def sig2():
        e.wait(vm=st_['f'])
        e(f'buffer_store_dword v6, v7, {srd(S_WS)}, s{sC2} offen offset:64 sc1')
    g2_ = s0 + C.rs_sum + C.rs_sig2
    instream2 = g2_ < 179
    if instream2:
        gap[g2_].append(lambda: (e.wait(vm=st_['f']), e(f'buffer_store_dword v{w}, v{vZ}, {srd(S_WS)}, s{sC2} offen offset:64 sc1')))
    mfq = []
    for ks in range(36):
        kb, v = divmod(ks, 4)
        st = qst[kb]
        for T in range(5):
            off = ring.stages[st].addr + 8*v*320 + 64*T
            a = ACC0 + 16*T
            mfq.append(dict(stage=st, reads=tr_reads(vT, off, 4*320), b=X(ks), acc=f'v[{a}:{a+15}]', first=(ks == 0)))
    if C.slotstamps:
        for g_ in (11, C.rs_sig1 - 1, C.rs_sig1 + 1, c1 - 1, c1 + 1, s0 - 1, s0 + C.rs_sum): gap[g_].append(lambda g_=g_: stamp(e, f'q gap {g_}'))
    run_stream(e, ring, mfq, gap, FR, dma_max_gap=C.q_dma_gap)
    stamp(e, 'Q gemm')
    e(f'v_mov_b32 v6, 1\nv_mov_b32 v7, 0\nv_accvgpr_read_b32 v2, a239')
    KA = 168
    def KAf(h): return 168 + 12*h if h < 5 else 0 + 12*(h - 5)
    zf = []
    for h in range(8):
        for i in range(4):
            if i != h % 4: zf.append(f'v_accvgpr_write_b32 a{KAf(h)+8+i}, 0')
    zf += [f'v_accvgpr_read_b32 v3, a235', f'v_accvgpr_read_b32 v5, a236', f's_mul_i32 s{sT0}, s{sWAVE}, 5120', f's_add_u32 s{sB2}, s{sB2}, s{sT0}']
    if C.sig2_early and not instream2: sig2()
    ld2 = f'buffer_load_dword v4, v2, {srd(S_WS)}, s{sC1} offen offset:64 sc1'
    if C.poll2_at == -1: e('s_nop 0'); e(ld2); pt = e.vm_tok()
    pack_proj(zf)
    if not C.sig2_early and not instream2: sig2()
    stamp(e, 'proj q')
    PQ = X0; L0 = X0 + 64; L1 = X0 + 68
    KF = X0 + 72
    vPOLL = 4
    def sm_q(a):
        o, p = softmax_ops(a, T1, S)
        for x in o: e(x)
        def dst(m): return PQ + 16*a + m if m < 16 else (L0 + a if m == 16 else L1 + a)
        for m in range(9): e(f'v_cvt_pk_bf16_f32 v{dst(m)}, v{p+2*m}, v{p+2*m+1}')
        for m in range(9): e(f'v_cvt_pk_bf16_f32 v{dst(9+m)}, v{T1+2*m}, v{T1+2*m+1}')
        for m in (0, 1, 2, 3, 8, 9, 10, 11): e(f'v_permlane32_swap_b32 v{PQ+16*a+m}, v{PQ+16*a+m+4}')
        e(f'v_permlane32_swap_b32 v{L0+a}, v{L1+a}')
    ld2 = f'buffer_load_dword v{vPOLL}, v2, {srd(S_WS)}, s{sC1} offen offset:64 sc1'
    for a in range(4):
        if a == C.poll2_at: e(ld2); pt = e.vm_tok()
        if a == C.poll2_at + 1:
            poll_check_all(e, ld2, vPOLL, pt, sT1)
            stamp(e, 'kv ready')
            for i in range(5):
                e(f's_add_u32 m0, s{sLQ}, {FL + (4096 if i == 4 else 0)}')
                e(f's_add_u32 s{sB2}, s{sB2}, 4096' if i == 4 else 's_nop 0')
                e(f'buffer_load_dwordx4 v{vL16}, {srd(S_WS)}, s{sB2} offen offset:{1024*(i % 4)} sc1 lds')
            ft = e.vm_tok()
        sm_q(a)
    stamp(e, 'softmax q')
    e.wait(vm=ft)
    e('s_barrier')
    kt = {}
    for h in range(8):
        for u in range(2):
            e(f'ds_read_b128 a[{KAf(h)+4*u}:{KAf(h)+4*u+3}], v5 offset:{2048*h + 1024*u}')
        e(f'ds_read_b32 a{KAf(h)+8+(h%4)}, v3 offset:{512*h}')
        kt[h] = e.lg_tok()
    def OD(h): return ACC0 + 16*h if h < 5 else KF + 16*(h - 5)
    e(f's_mul_i32 s{sT0}, s{sSG}, 9216')
    e(f's_add_u32 s{sT0}, s{sT0}, s{sXOFF}')
    e(f's_add_u32 s{sT0}, s{sT0}, {WS_O}')
    OP_ = KF + 48
    def opq(s): return OP_ + 4*s if s < 6 else TMP + 16 + 4*(s - 6)
    def oreg(idx): return OD(idx // 9) + idx % 9
    post = []
    done = [0]
    def finish_ops(h):
        d = OD(h)
        ops = [f'v_add_f32 v{d+10}, {f32(1e-6*LOG2E)}, v{d+9}', f'v_rcp_f32 v{d+10}, v{d+10}', 's_nop 0', f'v_mul_f32 v{d+10}, {f32(LN2)}, v{d+10}']
        ops += [f'v_mul_f32 v{d+i}, v{d+i}, v{d+10}' for i in range(9)]
        while 8*(done[0] + 1) <= 9*(h + 1):
            s = done[0]
            for i in range(4): ops.append(f'v_cvt_pk_bf16_f32 v{opq(s)+i}, v{oreg(8*s+2*i)}, v{oreg(8*s+2*i+1)}')
            if s and s % 4 == 0: ops.append(f's_add_u32 s{sT0}, s{sT0}, 4096')
            ops.append(f'buffer_store_dwordx4 v[{opq(s)}:{opq(s)+3}], v{vL16}, {srd(S_WS)}, s{sT0} offen offset:{1024*(s%4)} sc1')
            done[0] += 1
        return ops
    for h in range(8):
        e.wait(lg=kt[h])
        a, up = h % 4, h // 4
        d = f'v[{OD(h)}:{OD(h)+15}]'
        for step in range(3):
            b = PQ + 16*a + 8*step + 4*up if step < 2 else (L1 if up else L0)
            af = KAf(h) + 4*step
            e(f'v_mfma_f32_32x32x16_bf16 {d}, a[{af}:{af+3}], v[{b}:{b+3}], {0 if step == 0 else d}')
            for _ in range(6):
                if post: e(post.pop(0))
        if h >= 1: post += finish_ops(h - 1)
    post += finish_ops(7)
    for x in post: e(x)
    assert done[0] == 9
    stamp(e, 'o issued')
    e.wait_all()
    e(f'buffer_store_dword v6, v7, {srd(S_WS)}, s{sMYF} offen sc1')
    if C.o_pf:
        e(f'v_lshlrev_b32 v8, 7, v{vLANE}')
        e(f'v_and_b32 v9, 3, v{vLANE}')
        e(f'v_lshlrev_b32 v9, 7, v9')
        e(f's_add_u32 s{sT0}, s{sXOFF}, {WS_O}')
        e(f's_mul_i32 s{sT1}, s{sSG}, 9216')
        e(f's_add_u32 s{sT1}, s{sT1}, s{sT0}')
        e(f'buffer_load_dword v10, v8, {srd(S_WS)}, s{sT1} offen sc1')
        e(f'buffer_load_dword v10, v8, {srd(S_WS)}, s{sT1} offen offset:1024 sc1')
        e('L_opf:')
        e(f'buffer_load_dword v11, v9, {srd(S_WS)}, s{sFLG} offen offset:{12*128} sc1')
        e('s_waitcnt vmcnt(0)')
        e('v_cmp_ne_u32 vcc, 0, v11')
        e('s_cmp_eq_u64 vcc, -1')
        e('s_cbranch_scc0 L_opf')
        for i in (3, 2, 1, 0, 4):
            e(f's_add_u32 s{sT1}, s{sT0}, {min(8192*i, 36864 - 8192)}')
            e(f'buffer_load_dword v10, v8, {srd(S_WS)}, s{sT1} offen sc1')
    stamp_flush(e)
    e('s_endpgm')
```

```python
import sys, struct
from asmlib import *
from engine import *
from collections import defaultdict

NAME = 'recurrent_scan__linear_kernel_hedgehog__dense_activation_silu__prompt'
LOG2E = 1.4426950408889634
LN2 = 0.6931471805599453
def f32(x): return '0x%08x' % struct.unpack('<I', struct.pack('<f', x))[0]

class Cfg:
    stamps = False
    code_touch = True
    ffn_lead = 30
    attn_lead = 28
C = Cfg()

WS_P = 0
P_Q = 12 * 16384; P_TILE = 9 * P_Q
WS_O = 16 * P_TILE
WS_P1 = WS_O + 64 * 36864
WS_F = WS_P1 + 4 * 40 * 16384
WS_FLG = WS_F + 4 * 24 * 1024
WS_DBG = WS_FLG + 16 * 10240
WS_SIZE = 268435456
WS_USED = WS_DBG + (1 << 20)
OOB = 0x40000000

S_X, S_W1, S_W2, S_WS, S_WQKV, S_WPHI, S_WO, S_DBG, S_OUT = 8, 12, 16, 20, 24, 28, 32, 36, 4
sWAVE, sTILE, sROLE, sSG = 40, 41, 42, 43
sXOFF = 44
sONES, sMASK = 45, 46
sLDSW = 47
sB1, sB2 = 48, 49
sT0, sT1, sT2, sT3 = 50, 51, 52, 53
sSOFF = 54
sFLG = 55
sST = 56
sA0, sA1 = 57, 62
sPC = 60
sMY = 63
sRDY = 99
sROT = 3
sQ = 84
def srd(b): return f's[{b}:{b+3}]'

vLANE = 1
vL16 = 14
X0 = 16
ACC0 = 160
TMP = 224
def X(ks): return f'v[{X0+4*ks}:{X0+4*ks+3}]'

XA = 6144
XC = XA + 2*67584
XEND = XC + 16384
XAD = ACC0
LNS = ACC0 + 8
LNC = TMP + 30
ONE4 = ACC0 + 16
SX = TMP

_stamp_n = [0]
_lbl = [0]
def stamp(e, name=''):
    if not C.stamps or (C.stamps == 2 and name not in ('start', 'end')): return
    if C.stamps == 3 and name not in ('start', 'xA landed', 'stats done', 'gemm1 panel', 'gemm2 done', 'KV gemm', 'kv mfma', 'Q gemm', 'end'): return
    i = _stamp_n[0]; _stamp_n[0] += 1
    assert i < 32
    e('s_memtime s[58:59]')
    e('s_memrealtime s[100:101]')
    e('s_waitcnt lgkmcnt(0)'); e.lg_done = e.lg_n
    e('v_accvgpr_write_b32 a254, v0')
    e(f'v_accvgpr_read_b32 v0, a255')
    e(f'v_writelane_b32 v0, s58, {2*i}')
    e(f'v_writelane_b32 v0, s100, {2*i+1}')
    e('v_accvgpr_write_b32 a255, v0')
    e(f'v_accvgpr_read_b32 v0, a254')
def stamp_flush(e):
    if not C.stamps: return
    stamp(e, 'end')
    if C.stamps == 3:
        n = _lbl[0]; _lbl[0] += 1
        e(f's_lshl_b32 s58, s2, 2\ns_add_u32 s58, s58, s{sWAVE}\ns_mov_b32 s59, 0\ns_cmp_eq_u32 s58, 32\ns_cbranch_scc1 L_dg{n}\ns_mov_b32 s59, 32\ns_cmp_eq_u32 s58, 800\ns_cbranch_scc0 L_dx{n}\nL_dg{n}:')
        e('v_accvgpr_read_b32 v0, a255\ns_nop 1\nv_readlane_b32 s100, v0, 1\nv_mov_b32 v2, 0')
        for i in range(6):
            e(f'v_readlane_b32 s101, v0, {2*(i+1)+1}\ns_nop 3\ns_sub_u32 s101, s101, s100\nv_mov_b32 v3, s101')
            e(f'buffer_store_dword v3, v2, {srd(S_DBG)}, s59 offen offset:{4*(i + 1 + i // 3)}')
        e(f'L_dx{n}:')
        return
    e(f's_lshl_b32 s58, s2, 2\ns_add_u32 s58, s58, s{sWAVE}\ns_lshl_b32 s58, s58, 8\ns_add_u32 s58, s58, {WS_DBG}')
    e(f'v_lshlrev_b32 v0, 2, v{vLANE}')
    e(f'buffer_store_dword a255, v0, {srd(S_WS)}, s58 offen')

def bf16_round(e, dst, src):
    e(f'v_cvt_pk_bf16_f32 v{dst}, v{src}, v{src}')
    e(f'v_and_b32 v{dst}, s{sMASK}, v{dst}')

def lane_addr_ops(dst, A, B, C_, D, E_, tmp, B2=0):
    ops = []
    first = True
    for (sh, w, k) in ((5, 1, A), (2, 2, B), (0, 1, C_), (4, 1, D), (1, 1, E_), (3, 1, B2)):
        if k == 0: continue
        ops.append(f'v_bfe_u32 v{tmp}, v{vLANE}, {sh}, {w}')
        if first:
            ops.append(f'v_mul_u32_u24 v{dst}, {k}, v{tmp}'); first = False
        elif k & (k - 1) == 0:
            ops.append(f'v_lshl_add_u32 v{dst}, v{tmp}, {k.bit_length()-1}, v{dst}')
        else:
            ops.append(f'v_mul_u32_u24 v{tmp}, {k}, v{tmp}'); ops.append(f'v_add_u32 v{dst}, v{dst}, v{tmp}')
    return ops

def panel_traddr_ops(half_stride, regs, t):
    ops = lane_addr_ops(regs[0][0], half_stride, 128, 64, 16, 8, t, B2=32)
    ops.append(f'v_xor_b32 v{regs[1][0]}, 32, v{regs[0][0]}')
    for tt in range(2):
        for w in range(1, len(regs[tt])):
            ops.append(f'v_add_u32 v{regs[tt][w]}, {65536*w}, v{regs[tt][0]}')
    return ops

def panel_voffset_ops(regs, ldw, t):
    ops = [f'v_lshrrev_b32 v{t}, 3, v{vLANE}', f'v_mul_u32_u24 v{t}, {ldw}, v{t}', f'v_and_b32 v{t+1}, 7, v{vLANE}',
           f'v_lshrrev_b32 v{t+2}, 3, v{vLANE}', f'v_and_b32 v{t+2}, 2, v{t+2}', f'v_xor_b32 v{t+1}, v{t+1}, v{t+2}',
           f'v_lshl_add_u32 v{regs[0]}, v{t+1}, 4, v{t}']
    for i in range(1, len(regs)):
        ops.append(f'v_add_u32 v{regs[i]}, {8*ldw-1024}, v{regs[i-1]}')
    return ops

def tr_reads(regs, off, second):
    def fn(k, f):
        out = []
        for i, o in enumerate((off, off + second)):
            w, oo = divmod(o, 65536)
            out.append(f'ds_read_b64_tr_b16 {k}[{f+2*i}:{f+2*i+1}], v{regs[w]} offset:{oo}')
        return out
    return fn

class Table:
    def __init__(self): self.lane = {0: [], 1: []}; self.thr = {0: [], 1: []}
    def text(self):
        out = []
        for role in (0, 1):
            out.append(f'.p2align 7\nL_tab{role}:')
            for g in self.lane[role] + [[lambda l: 0]*4] * (NLG - len(self.lane[role])):
                for l in range(64): out.append('.long ' + ', '.join('0x%x' % (f(l) & 0xffffffff) for f in g))
            for g in self.thr[role] + [[lambda w, l: 0]*4] * (NTG - len(self.thr[role])):
                for w in range(4):
                    for l in range(64): out.append('.long ' + ', '.join('0x%x' % (f(w, l) & 0xffffffff) for f in g))
        out.append('L_tabend:')
        return '\n'.join(out) + '\n'
TAB = Table()
NLG, NTG = 10, 3
LG_DST = ['v[2:5]', 'v[6:9]', 'v[10:13]', 'a[132:135]', 'a[136:139]', 'a[224:227]', 'a[228:231]', 'a[140:143]']
LG_DST_ATT = ['v[2:5]', 'v[6:9]', 'v[10:13]', 'a[132:135]', 'a[136:139]', 'a[232:235]', 'a[236:239]', 'a[140:143]', 'a[156:159]', 'a[160:163]']
IDA = 232
def _ident(m):
    def f(l):
        i, hfk = l & 31, l >> 5
        r = (i & 3) + 4*(i >> 3); hf = (i >> 2) & 1
        return (0x3f80 << (16*(r & 1))) if (hf == hfk and (r >> 1) == m) else 0
    return f
TG_DST = ['a[144:147]', 'a[148:151]', 'a[152:155]']
def lane_fn(A, B, C_, D, E_, B2=0, K=0):
    return lambda l: (l >> 5)*A + ((l >> 2) & 3)*B + (l & 1)*C_ + ((l >> 4) & 1)*D + ((l >> 1) & 1)*E_ + ((l >> 3) & 1)*B2 + K

def prologue(e, early):
    e('s_cmp_ge_u32 s2, 256\ns_cbranch_scc0 L_go\ns_endpgm\nL_go:')
    if C.stamps:
        e('v_accvgpr_write_b32 a255, 0')
        stamp(e, 'start')
    e('s_load_dwordx16 s[64:79], s[0:1], 0')
    e('s_load_dwordx4 s[80:83], s[0:1], 64')
    e(f's_getpc_b64 s[{sPC}:{sPC+1}]')
    e('L_pc:')
    t = TMP
    e(f'v_lshrrev_b32 v{t}, 6, v0')
    e(f'v_and_b32 v{vLANE}, 63, v0')
    e(f'v_readfirstlane_b32 s{sWAVE}, v{t}')
    e(f's_and_b32 s{sT0}, s2, 7')
    e(f's_lshr_b32 s{sT1}, s2, 3')
    e(f's_lshr_b32 s{sSG}, s{sT0}, 1')
    e(f's_and_b32 s{sT0}, s{sT0}, 1')
    e(f's_lshl_b32 s{sT0}, s{sT0}, 3')
    e(f's_and_b32 s{sT2}, s{sT1}, 7')
    e(f's_add_u32 s{sTILE}, s{sT0}, s{sT2}')
    e(f's_lshr_b32 s{sROLE}, s{sT1}, 3')
    if C.attn_first: e(f's_sub_u32 s{sROLE}, 3, s{sROLE}')
    e(f'v_lshlrev_b32 v{vL16}, 4, v{vLANE}')
    e(f'v_lshlrev_b32 v{t+5}, 4, v0')
    e(f's_cmp_eq_u32 s{sROLE}, 3')
    e(f's_cselect_b32 s{sT0}, L_tab1-L_tab0, 0')
    e(f's_add_u32 s{sT0}, s{sT0}, L_tab0-L_pc+4096')
    e(f's_add_u32 s96, s{sPC}, s{sT0}')
    e(f's_addc_u32 s97, s{sPC+1}, 0')
    if C.code_touch:
        e(f'v_min_u32 v{t+6}, 7, v{vLANE}')
        e(f'v_lshl_add_u32 v{t+6}, v{t}, 3, v{t+6}')
        e(f's_lshl_b32 s{sT1}, s{sT1}, 5')
        e(f'v_add_u32 v{t+6}, s{sT1}, v{t+6}')
        e(f'v_lshlrev_b32 v{t+6}, 7, v{t+6}')
        e(f'v_min_u32 v{t+6}, L_tabend-L_pc-4, v{t+6}')
        e(f'global_load_dword v{t+7}, v{t+6}, s[{sPC}:{sPC+1}]')
    e(f's_mul_i32 s{sMY}, s{sSG}, 3')
    e(f's_add_u32 s{sMY}, s{sMY}, s{sROLE}')
    e(f's_add_u32 s{sT0}, s{sSG}, 12')
    e(f's_cmp_eq_u32 s{sROLE}, 3')
    e(f's_cselect_b32 s{sMY}, s{sT0}, s{sMY}')
    e(f's_lshl_b32 s{sT0}, s{sTILE}, 2')
    e(f's_add_u32 s{sT0}, s{sT0}, s{sWAVE}')
    e(f's_mul_i32 s{sXOFF}, s{sT0}, {32*1152}')
    e(f's_mul_i32 s{sFLG}, s{sTILE}, 10240')
    e(f's_add_u32 s{sFLG}, s{sFLG}, {WS_FLG}')
    e(f's_mov_b32 s{sONES}, 0x3f803f80')
    e(f's_mov_b32 s{sMASK}, 0xffff0000')
    vA, vC0, vC1, vB = TMP+24, TMP+25, TMP+26, TMP+27
    e(f's_and_b32 s{sT0}, s{sTILE}, 7')
    e(f's_mul_i32 s{sT1}, s{sT0}, 86')
    e(f's_lshr_b32 s{sT1}, s{sT1}, 8')
    e(f's_mul_i32 s{sT1}, s{sT1}, 3')
    e(f's_sub_u32 s{sT1}, s{sT0}, s{sT1}')
    e(f's_mul_i32 s{sT1}, s{sT1}, {3 if C.rot_f else 0}')
    if not C.rot_a: e(f's_mov_b32 s{sT0}, 0')
    e(f's_cmp_eq_u32 s{sROLE}, 3')
    e(f's_cselect_b32 s{sROT}, s{sT0}, s{sT1}')
    e(f's_lshl_b32 s{sT0}, s{sROT}, 3')
    e(f'v_lshrrev_b32 v{t}, 5, v{vLANE}')
    e(f'v_and_b32 v{t+1}, 31, v{vLANE}')
    e(f'v_xor_b32 v{t+1}, v{t+1}, v{t}')
    e(f'v_mul_u32_u24 v{t}, 1152, v{t}')
    e(f'v_add_u32 v{t+1}, s{sT0}, v{t+1}')
    e(f'v_subrev_u32 v{t+2}, 72, v{t+1}')
    e(f'v_min_u32 v{t+2}, v{t+1}, v{t+2}')
    e(f'v_lshl_add_u32 v{vA}, v{t+2}, 4, v{t}')
    e(f'v_add_u32 v{t+1}, 32, v{t+1}')
    e(f'v_subrev_u32 v{t+2}, 72, v{t+1}')
    e(f'v_min_u32 v{t+2}, v{t+1}, v{t+2}')
    e(f'v_lshl_add_u32 v{vB}, v{t+2}, 4, v{t}')
    e(f's_sub_u32 s{sT0}, s{sROT}, 1')
    e(f's_cselect_b32 s{sT0}, 8, s{sT0}')
    e(f's_lshl_b32 s{sT0}, s{sT0}, 7')
    e(f'v_lshrrev_b32 v{t}, 3, v{vLANE}')
    e(f'v_mul_u32_u24 v{t}, 1152, v{t}')
    e(f'v_add_u32 v{t}, s{sT0}, v{t}')
    e(f'v_and_b32 v{t+1}, 7, v{vLANE}')
    e(f'v_lshrrev_b32 v{t+2}, 4, v{vLANE}')
    e(f'v_xor_b32 v{t+1}, v{t+1}, v{t+2}')
    e(f'v_lshl_add_u32 v{vC0}, v{t+1}, 4, v{t}')
    e(f's_and_b32 s{sT0}, s{sROLE}, 1')
    e(f's_lshl_b32 s{sT0}, s{sT0}, 6')
    e(f'v_xor_b32 v{vC0}, s{sT0}, v{vC0}')
    e(f'v_xor_b32 v{vC1}, 64, v{vC0}')
    e(f's_mul_i32 s{sLDSW}, s{sWAVE}, 16896')
    e(f's_lshl_b32 s{sT3}, s{sWAVE}, 12')
    for n in range(4):
        e(f's_add_u32 s{sT0}, s{sROLE}, {n}')
        e(f's_and_b32 s{sT0}, s{sT0}, 3')
        e(f's_mul_i32 s{sT1}, s{sT0}, 9216')
        e(f's_add_u32 s{sQ+n}, s{sXOFF}, s{sT1}')
        e(f's_mul_i32 s{sT1}, s{sT0}, 4224')
        e(f's_add_u32 s{sQ+4+n}, s{sLDSW}, s{sT1}')
        e(f's_lshl_b32 s{sT1}, s{sT0}, 10')
        e(f's_add_u32 s{sQ+8+n}, s{sT3}, s{sT1}')
    e('s_waitcnt lgkmcnt(0)')
    def mksrd(b, p, nbytes): e(f's_mov_b32 s{b}, s{p}\ns_mov_b32 s{b+1}, s{p+1}\ns_mov_b32 s{b+2}, {nbytes}\ns_mov_b32 s{b+3}, 0x20000')
    stamp(e, 'kernarg')
    mksrd(S_X, 64, 2048*576*2)
    def ab(part, n, j):
        imm = 2304*(j & 1)
        so = f's{sQ+n}' if j < 2 else f's{sSOFF}'
        it = [f's_add_u32 m0, s{sQ+4+n}, {XA + part*67584 + 1056*j - imm}']
        it.append(f's_add_u32 s{sSOFF}, s{sQ+n}, 4608' if j == 2 else 's_nop 0')
        it.append(f'buffer_load_dwordx4 v{vB if part else vA}, {srd(S_X)}, {so} offen offset:{imm} lds')
        return it
    def cc(n):
        return [f's_add_u32 m0, s{sQ+8+n}, {XC}', 's_nop 0', f'buffer_load_dwordx4 v{[vC0, vC1][n & 1]}, {srd(S_X)}, s{sQ+n} offen lds']
    own = [ab(0, 0, j) for j in range(4)] + [ab(1, 0, j) for j in range(4)] + [cc(0)]
    restA = [ab(0, n, j) for n in range(1, 4) for j in range(4)]
    restB = [ab(1, n, j) for n in range(1, 4) for j in range(4)] + [cc(n) for n in range(1, 4)]
    if not C.early_first:
        for it in own:
            for x in it: e(x)
        stamp(e, 'own issued')
    def tabs(late):
        for g in range(8):
            if (g > 2) == late or not C.tab_late: e(f'global_load_dwordx4 {LG_DST_ATT[g]}, v{vL16}, s[96:97] offset:{1024*g - 4096}')
        if C.tab_late and not late: return
        e('s_add_u32 s96, s96, 6144\ns_addc_u32 s97, s97, 0')
        for g in (8, 9):
            e(f'global_load_dwordx4 {LG_DST_ATT[g]}, v{vL16}, s[96:97] offset:{1024*(g - 10)}')
        for g in range(NTG):
            if g: e('s_add_u32 s96, s96, 4096\ns_addc_u32 s97, s97, 0')
            e(f'global_load_dwordx4 {TG_DST[g]}, v{t+5}, s[96:97]')
    tabs(False)
    for (b, p, nbytes) in [(S_WQKV, 66, 576*1728*2), (S_WPHI, 68, 32*18*18*2), (S_WO, 70, 576*576*2),
                           (S_W1, 74, 576*4608*2), (S_W2, 76, 576*4608*2), (S_OUT, 78, 2048*576*2), (S_DBG, 80, 256), (S_WS, 82, WS_USED)]:
        mksrd(b, p, nbytes)
    e(f's_and_b32 s{sT0}, s{sTILE}, 3')
    e(f's_mul_i32 s{sT0}, s{sT0}, {3 if C.vrot else 0}')
    e(f's_add_u32 s{sT0}, s{sT0}, s{sMY}')
    e(f's_cmp_ge_u32 s{sT0}, 12')
    e(f's_cselect_b32 s{sT1}, 12, 0')
    e(f's_sub_u32 s72, s{sT0}, s{sT1}')
    e(f's_cmp_eq_u32 s{sROLE}, 3')
    e(f's_cselect_b32 s72, s{sMY}, s72')
    z = TMP + 16
    for i in range(4): e(f'v_mov_b32 v{z+i}, 0')
    e(f's_mul_i32 s{sT0}, s{sWAVE}, 2560')
    e(f's_add_u32 s{sT0}, s{sT0}, s{sFLG}')
    e(f's_lshl_b32 s{sRDY}, s{sTILE}, 4')
    e(f's_cmp_eq_u32 s72, 11')
    e(f's_cselect_b32 s{sT0}, s{sT0}, {OOB}')
    e(f's_cselect_b32 s{sRDY}, s{sRDY}, {OOB}')
    for o_ in (0, 1024, 1536):
        e(f'buffer_store_dwordx4 v[{z}:{z+3}], v{vL16}, {srd(S_WS)}, s{sT0} offen offset:{o_} sc1')
    e(f's_cmp_eq_u32 s{sWAVE}, 0')
    e(f's_cselect_b32 s{sRDY}, s{sRDY}, {OOB}')
    e(f's_lshl_b32 s{sT0}, s{sWAVE}, 11')
    e(f's_add_u32 s{sFLG}, s{sFLG}, s{sT0}')
    e(f's_lshl_b32 s{sT0}, s72, 7')
    e(f's_add_u32 s{sA1}, s{sFLG}, s{sT0}')
    if C.tlbwarm:
        e(f'v_lshlrev_b32 v{t+8}, 21, v{vLANE}')
        e(f's_lshr_b32 s{sT1}, s2, 3')
        e(f's_lshl_b32 s{sT1}, s{sT1}, 2')
        e(f's_add_u32 s{sT1}, s{sT1}, s{sWAVE}')
        for n_, S_ in enumerate((S_W1, S_WQKV, S_W2, S_WO, S_OUT, S_WS)):
            e(f's_cmp_eq_u32 s{sT1}, {35 + 16*n_}')
            e(f's_cselect_b32 s{sT0}, 0, {OOB}')
            e(f'buffer_load_dword v{t+9}, v{t+8}, {srd(S_)}, s{sT0} offen')
    early(e)
    if C.early_first:
        for it in own:
            for x in it: e(x)
        stamp(e, 'own issued')
    be, bo, bc = XAD, XAD+1, XAD+2
    e(f'v_bfe_u32 v{t}, v{vLANE}, 1, 4')
    e(f'v_mul_u32_u24 v{t+1}, 1056, v{t}')
    e(f'v_and_b32 v{t+2}, 1, v{vLANE}')
    e(f'v_lshl_add_u32 v{t+1}, v{t+2}, 9, v{t+1}')
    e(f'v_lshrrev_b32 v{t+3}, 5, v{vLANE}')
    e(f'v_lshl_add_u32 v{t+1}, v{t+3}, 6, v{t+1}')
    e(f'v_add_u32 v{t+1}, s{sLDSW}, v{t+1}')
    e(f'v_lshlrev_b32 v{t+2}, 4, v{t+2}')
    e(f'v_add_u32 v{be}, v{t+1}, v{t+2}')
    e(f'v_sub_u32 v{bo}, v{t+1}, v{t+2}')
    e(f'v_add_u32 v{be+6}, 67584, v{be}')
    e(f'v_add_u32 v{bo+6}, 67584, v{bo}')
    e(f'v_and_b32 v{t}, 7, v{t}')
    e(f'v_lshlrev_b32 v{t+3}, 2, v{t+3}')
    e(f'v_xor_b32 v{t}, v{t}, v{t+3}')
    e(f'v_and_b32 v{t+1}, 31, v{vLANE}')
    e(f'v_lshlrev_b32 v{t+1}, 7, v{t+1}')
    e(f'v_lshl_add_u32 v{t+1}, v{t}, 4, v{t+1}')
    e(f'v_add_u32 v{t+1}, {XC}, v{t+1}')
    e(f'v_add_u32 v{bc}, s{sT3}, v{t+1}')
    for v in range(1, 4): e(f'v_xor_b32 v{bc+v}, {16*v}, v{bc}')
    s1 = [LNS, LNS+1]; s2 = [LNS+2, LNS+3]
    for r in s1 + s2: e(f'v_mov_b32 v{r}, 0')
    for it in restA:
        for x in it: e(x)
    tokA = e.vm_tok()
    stamp(e, 'restA issued')
    NB = C.nb_pre
    for it in restB[:NB]:
        for x in it: e(x)
    lt = {}
    def rd(ks):
        p, v = divmod(ks, 4)
        if p < 8:
            e(f'ds_read_b128 {X(ks)}, v{(bo if v & 1 else be) + 6*(p >> 2)} offset:{XA + 128*(p & 3) + 16*v}')
        else:
            e(f'ds_read_b128 {X(ks)}, v{bc+v}')
        lt[ks] = e.lg_tok()
    def p1(ks):
        e.wait(lg=lt[ks])
        for i in range(4):
            r = X0 + 4*ks + i
            e(f'v_dot2c_f32_bf16 v{s1[i%2]}, s{sONES}, v{r}')
            e(f'v_dot2c_f32_bf16 v{s2[i%2]}, v{r}, v{r}')
    e.wait(vm=tokA)
    stamp(e, 'xA landed')
    rb = restB[NB:]
    for ks in range(16):
        rd(ks)
        if ks % 4 == 3 and rb:
            for x in rb.pop(0): e(x)
    for ks in range(16):
        if rb:
            for x in rb.pop(0): e(x)
        p1(ks)
    assert not rb
    tokB = e.vm_tok()
    if C.tab_late: tabs(True)
    tokT = e.vm_tok()
    return dict(tokT=tokT, tokB=tokB, rd=rd, p1=p1)

TAILCODE = []
def poll_check(e, load_text, vdst, tok, need, stmp):
    n = _lbl[0]; _lbl[0] += 1
    e.wait(vm=tok)
    e(f'v_readfirstlane_b32 s{stmp}, v{vdst}')
    e(f's_cmp_ge_u32 s{stmp}, {need}')
    e(f's_cbranch_scc0 L_sp{n}')
    e(f'L_ok{n}:')
    TAILCODE.append(f'L_sp{n}:\ns_sleep 1\n{load_text}\ns_waitcnt vmcnt(0)\nv_readfirstlane_b32 s{stmp}, v{vdst}\ns_nop 1\ns_cmp_ge_u32 s{stmp}, {need}\ns_cbranch_scc0 L_sp{n}\ns_branch L_ok{n}')

def poll_check_all(e, load_text, vdst, tok, stmp):
    n = _lbl[0]; _lbl[0] += 1
    e.wait(vm=tok)
    e(f'v_cmp_ne_u32 vcc, 0, v{vdst}')
    e(f's_cmp_eq_u64 vcc, -1')
    e(f's_cbranch_scc0 L_sp{n}')
    e(f'L_ok{n}:')
    TAILCODE.append(f'L_sp{n}:\ns_sleep 2\n{load_text}\ns_waitcnt vmcnt(0)\nv_cmp_ne_u32 vcc, 0, v{vdst}\ns_nop 1\ns_cmp_eq_u64 vcc, -1\ns_cbranch_scc0 L_sp{n}\ns_branch L_ok{n}')

def ln_finish(e, xs, ring, touches=(), maxpump=99):
    left = [maxpump]
    def pump():
        if left[0] > 0: ring.pump(1); left[0] -= 1
    e.wait(vm=xs['tokB'])
    stamp(e, 'x all landed')
    for ks in range(16, 36): xs['rd'](ks)
    for ks in range(16, 36):
        if ks % 2: pump()
        xs['p1'](ks)
    s2 = [LNS+2, LNS+3]
    a, b, c, d = LNS+4, LNS+5, LNS+6, LNS+7
    e(f'v_add_f32 v{a}, v{LNS}, v{LNS+1}')
    e(f'v_add_f32 v{c}, v{s2[0]}, v{s2[1]}')
    e(f'v_mov_b32 v{b}, v{a}')
    e(f'v_mov_b32 v{d}, v{c}')
    pump()
    e(f'v_permlane32_swap_b32 v{a}, v{b}')
    e(f'v_add_f32 v{a}, v{a}, v{b}')
    e(f'v_mul_f32 v{a}, {f32(-1.0/576)}, v{a}')
    bf16_round(e, b, a)
    for i in range(16): e(f'v_mov_b32 v{SX+i}, v{b}')
    rest = [f'v_permlane32_swap_b32 v{c}, v{d}', f'v_add_f32 v{c}, v{c}, v{d}', f'v_mul_f32 v{c}, {f32(1.0/576)}, v{c}', f'v_fma_f32 v{c}, -v{a}, v{a}, v{c}', f'v_max_f32 v{c}, 0, v{c}',
            f'v_cvt_pk_bf16_f32 v{c}, v{c}, v{c}', f'v_and_b32 v{c}, s{sMASK}, v{c}', f'v_add_f32 v{c}, {f32(1e-5)}, v{c}',
            f'v_cvt_pk_bf16_f32 v{c}, v{c}, v{c}', f'v_and_b32 v{c}, s{sMASK}, v{c}', f'v_sqrt_f32 v{c}, v{c}', 's_nop 0',
            f'v_cvt_pk_bf16_f32 v{c}, v{c}, v{c}', f'v_and_b32 v{LNC+1}, s{sMASK}, v{c}', f'v_rcp_f32 v{c}, v{LNC+1}', 's_nop 0',
            f'v_mul_f32 v{LNC}, {f32(LOG2E)}, v{c}']
    xs['rest'] = rest
    e.wait(vm=xs['tokT'])
    ring.pump(C.pre_touch_pump)
    for x in touches: e(x)
    stamp(e, 'stats done')

def center_mf(j, D):
    d = f'v[{D}:{D+15}]'
    return [dict(stage=None, a=f'a[{IDA}:{IDA+3}]', b=X(2*j), acc=d, c=f'v[{SX}:{SX+15}]'),
            dict(stage=None, a=f'a[{IDA+4}:{IDA+7}]', b=X(2*j+1), acc=d)]
def center_cvt(j, D):
    return [f'v_cvt_pk_bf16_f32 v{X0+8*j+i}, v{D+2*i}, v{D+2*i+1}' for i in range(8)]
def center_block(e, js, Ds, fill=(), ring=None):
    fill = list(fill); pend = []
    for n, j in enumerate(js):
        D = Ds[n % len(Ds)]
        for k, m in enumerate(center_mf(j, D)):
            e(f"v_mfma_f32_32x32x16_bf16 {m['acc']}, {m['a']}, {m['b']}, {m.get('c') or m['acc']}")
            if len(pend) > 8*(len(Ds) - 2):
                for _ in range(4): e(pend.pop(0))
            elif fill:
                for _ in range(4):
                    if fill: e(fill.pop(0))
        pend += center_cvt(j, D)
        if ring is not None and n % 2: ring.pump(1)
    for x in fill: e(x)
    for x in pend: e(x)

def code_touch_op(label, dst, vtmp):
    return [f'v_lshlrev_b32 v{vtmp}, 7, v{vLANE}', f'v_add_u32 v{vtmp}, {label}-L_pc, v{vtmp}', f'v_min_u32 v{vtmp}, L_tabend-L_pc-4, v{vtmp}',
            f'global_load_dword v{dst}, v{vtmp}, s[{sPC}:{sPC+1}]']

def jit_touch(e, vaddr, vdst):
    def f():
        n = _lbl[0]; _lbl[0] += 1
        e(f'L_ct{n}:')
        e(f's_add_u32 s100, s{sPC}, L_ct{n}-L_pc+{C.ct_ahead}')
        e(f's_addc_u32 s101, s{sPC+1}, 0')
        e(f'global_load_dword v{vdst}, v{vaddr}, s[100:101]')
    return (C.ct_every, f) if C.ct_every else None
```

```python
from collections import defaultdict, deque
from asmlib import *

class Stage:
    def __init__(self, addr, size, items, name=''):
        self.addr = addr; self.size = size
        self.items = items
        self.tok = None
        self.name = name
        self.published = False

class Ring:
    def __init__(self, em):
        self.em = em
        self.stages = []
        self.released = 0
        self.queued = 0
        self.q = deque()
        self.reserved = []
        self.consumed = 0
        self.maxahead = None
    def add(self, st):
        self.stages.append(st); return len(self.stages) - 1
    def _free(self, st):
        lo, hi = st.addr, st.addr + st.size
        for j in range(self.released, self.queued):
            o = self.stages[j]
            if lo < o.addr + o.size and o.addr < hi: return False
        for (a, b) in self.reserved:
            if lo < b and a < hi: return False
        return True
    def refill(self, limit=None):
        n = 0
        while self.queued < len(self.stages) and self._free(self.stages[self.queued]) and (limit is None or n < limit) and (self.maxahead is None or self.queued - self.released < self.maxahead + 2):
            st = self.stages[self.queued]
            for k, it in enumerate(st.items):
                self.q.append((self.queued, it, k == len(st.items) - 1))
            self.queued += 1; n += 1
    def pump(self, n=1):
        while n > 0 and self.q:
            s, it, last = self.q.popleft()
            for x in it: self.em(x)
            if last: self.stages[s].tok = self.em.vm_tok()
            n -= 1
    def pump_all(self): self.pump(10**9)
    def barrier(self, publish=None, lg=False):
        if publish is not None:
            while self.stages[publish].tok is None:
                assert self.q, f'stage {publish} {self.stages[publish].name} never queued (released={self.released}, queued={self.queued})'
                self.pump(1)
            self.em.wait(vm=self.stages[publish].tok)
            for j in range(publish + 1): self.stages[j].published = True
        if lg: self.em.wait(lg=self.em.lg_tok())
        self.em('s_barrier')
        self.released = self.consumed
        self.refill()

def spread(gapfill, instrs, start, end):
    costs = [(x[1] if isinstance(x, tuple) else cost(x)) for x in instrs]
    tot = sum(costs); n = max(1, end - start)
    acc = 0
    for x, c in zip(instrs, costs):
        g = start + min(n - 1, int((acc + c / 2) * n / tot))
        gapfill[g].append(x[0] if isinstance(x, tuple) else x)
        acc += c

def run_stream(em, ring, mf, gapfill, frag_base, nfrag=12, group=4, ahead=8, fragk='a', pre=None, tail_fill=True, dma_min_gap=2, pre_first=False, dma_max_gap=2, dma_margin=20, dma_relax=4, quiet=(), ctouch=None, smooth=False):
    n = len(mf)
    toks = [None] * n
    last_of_stage = {}
    first_of_stage = {}
    for i, m in enumerate(mf):
        if m.get('stage') is not None:
            last_of_stage[m['stage']] = i
            first_of_stage.setdefault(m['stage'], i)
    bar_at = sorted(first_of_stage.values())
    def frag(i): return frag_base + (i % nfrag) * 4
    rq = deque()
    for j, m in enumerate(mf):
        rs = m['reads'](fragk, frag(j)) if m.get('reads') else [None]
        for k, x in enumerate(rs): rq.append((j, x, k == len(rs) - 1))
    def issue_one():
        j, x, last = rq.popleft()
        s = mf[j].get('stage')
        if s is not None and not ring.stages[s].published:
            ring.barrier(publish=s)
        if x is not None: em(x)
        if last: toks[j] = em.lg_tok()
        return x is not None
    def issue_reads(j):
        while rq and rq[0][0] <= j: issue_one()
    heavy = {g for g, xs_ in gapfill.items() if any(isinstance(x, str) and 'buffer_store_dwordx4' in x for x in xs_)} if smooth else set()
    if pre and pre_first:
        k = max(0, len(pre) - 20)
        for x in pre[:k]:
            x() if callable(x) else em(x)
        pre = pre[k:]
    for j in range(min(ahead, n)):
        issue_reads(j)
    if pre:
        for x in pre:
            x() if callable(x) else em(x)
    since = 0
    for i, m in enumerate(mf):
        if i % group == 0:
            em.wait(lg=toks[min(i + group - 1, n - 1)])
        if m.get('prewait'): m['prewait']()
        a = m.get('a') or f'{fragk}[{frag(i)}:{frag(i)+3}]'
        b = m['b']; d = m['acc']
        c = m.get('c') or ('0' if m.get('first') else d)
        if m.get('swap'): a, b = b, a
        em(f'v_mfma_f32_32x32x16_bf16 {d}, {a}, {b}, {c}')
        s = m.get('stage')
        if s is not None and last_of_stage[s] == i:
            ring.consumed = max(ring.consumed, s + 1)
        j = i + ahead
        if j < n: issue_reads(j)
        if (i + 1 in heavy or i + 2 in heavy) and i not in heavy:
            lim = j + (1 if i + 1 in heavy else 2)
            while rq and rq[0][0] <= lim and rq[0][0] - nfrag <= i:
                if issue_one(): break
        if ring.q:
            since += 1
            hs = ring.q[0][0]
            dl = first_of_stage.get(hs, n + 10**6) - ahead - i
            left = sum(1 for x in ring.q if x[0] == hs)
            urgent = dl - dma_margin < left * dma_max_gap
            only_salu = not any('buffer_load' in x for x in ring.q[0][1])
            nb = next((x - ahead for x in bar_at if x - ahead > i), n)
            relaxed = max(dma_max_gap, min(dma_relax, (nb - i) // len(ring.q)))
            isquiet = any(a_ <= i < b_ for a_, b_ in quiet)
            if (only_salu or since >= (1 if urgent else relaxed)) and (urgent or not (isquiet or i in heavy or i + 1 in heavy or i + 2 in heavy)):
                ring.pump(1)
                if not only_salu: since = 0
        if ctouch and i % ctouch[0] == 5: ctouch[1]()
        for x in gapfill.pop(i, []):
            x() if callable(x) else em(x)
    if tail_fill:
        for g in sorted(gapfill):
            for x in gapfill[g]:
                x() if callable(x) else em(x)
        gapfill.clear()
```

```python
from common import *
from common import _stamp_n, _lbl, _ident

vD = [2, 3, 4]
vE = [5, 6, 7]
vTR = [[8, 9, 10], [11, 12, 13]]
H0 = 0; FR = 160
YACC = X0 + 96
SACC = ACC0
sPB = sA0
sMYF = sA1
sPS = 93
sJ = 96
sV = 72
sFLQ = 97

def _pv(ldw, i): return lambda l: (l >> 3)*ldw + 16*((l & 7) ^ ((l >> 3) & 2)) + i*(8*ldw - 1024)
def _tr(hs, t, w): return lambda l: (lane_fn(hs, 128, 64, 16, 8, B2=32)(l) ^ (32*t)) + 65536*w
def _wo(i):
    def f(w, l):
        rho = min(40*w + 8*i + (l >> 3), 143)
        hfk, idx = divmod(rho, 72)
        return (18*(idx // 9) + 9*hfk + idx % 9)*1152 + 16*((l & 7) ^ ((l >> 3) & 2))
    return f
TAB.lane[0] = [
    [_pv(9216, 0), _pv(9216, 1), _pv(9216, 2), _pv(1152, 0)], [_pv(1152, 1), _pv(1152, 2), _tr(4096, 0, 0), _tr(4096, 0, 1)],
    [_tr(4096, 0, 2), _tr(4096, 1, 0), _tr(4096, 1, 1), _tr(4096, 1, 2)],
    [_tr(9216, 0, 0), _tr(9216, 0, 1), _tr(9216, 0, 2), _tr(9216, 1, 0)],
    [_tr(9216, 1, 1), _tr(9216, 1, 2), lambda l: (l & 31)*1152 + 64*(l >> 5), lambda l: 128*min(l, 15)],
    [_ident(0), _ident(1), _ident(2), _ident(3)], [_ident(4), _ident(5), _ident(6), _ident(7)],
    [lambda l: (9 - (l + 1) if l < 9 else 9 - 3*(l - 9) if l < 12 else 0), lambda l: (15 if l < 12 else 0), lambda l: 0, lambda l: 0],
]
TAB.thr[0] = [[_wo(0), _wo(1), _wo(2), _wo(3)], [_wo(4), lambda w, l: 128*(C.tl*w + min(l, C.tl - 1)), lambda w, l: (18*w + min(l, 17))*9216, lambda w, l: (18*w + min(l, 35) // 2)*9216 + 128*(min(l, 35) & 1)]]

def silu_ops(acc, hdst):
    ops = []
    T = TMP
    for g in range(4):
        t = T + 4 * (g % 2)
        for i in range(4): ops.append(f'v_mul_f32 v{t+i}, v{LNC+1}, v{acc+4*g+i}')
        for i in range(4): ops.append(f'v_exp_f32 v{t+i}, v{t+i}')
        for i in range(4): ops.append(f'v_add_f32 v{t+i}, 1.0, v{t+i}')
        for i in range(4): ops.append(f'v_rcp_f32 v{t+i}, v{t+i}')
        for i in range(4): ops.append(f'v_mul_f32 v{t+i}, v{acc+4*g+i}, v{t+i}')
        for i in range(2): ops.append(f'v_cvt_pk_bf16_f32 v{T+8+2*(g%2)+i}, v{t+2*i}, v{t+2*i+1}')
        for i in range(2): ops.append(f'v_accvgpr_write_b32 a{hdst+2*g+i}, v{T+8+2*(g%2)+i}')
    return ops

def group_scc(ops):
    out = []; i = 0
    while i < len(ops):
        if isinstance(ops[i], str) and ops[i].startswith('s_cmp'):
            out.append((ops[i] + '\n' + ops[i+1], 8)); i += 2
        else: out.append(ops[i]); i += 1
    return out

def ffn_path(e, xs):
    e(f's_mul_i32 s{sB1}, s{sMY}, 768')
    e(f's_mul_i32 s{sT1}, s{sWAVE}, {48*9216}')
    e(f's_add_u32 s{sB1}, s{sB1}, s{sT1}')
    e(f's_mul_i32 s{sLDSW}, s{sWAVE}, 6144')
    e(f's_mul_i32 s{sT0}, s{sROT}, {64*9216}')
    for k in range(3):
        e(f's_add_u32 s{80+k}, s{sB1}, s{sT0}')
        if k < 2:
            e(f's_add_u32 s{sT0}, s{sT0}, {192*9216}')
            e(f's_cmp_ge_u32 s{sT0}, {576*9216}')
            e(f's_cselect_b32 s{sT0}, 0, s{sT0}')
    ring = Ring(e)
    NS = 6
    def mk(idx, base, goff, ldw, regs, S, name):
        addr = (idx % NS) * 24576
        items = []
        for half in range(2):
            items.append([f's_add_u32 m0, s{sLDSW}, {addr + half*3072}', f's_add_u32 s{sSOFF}, s{base}, {goff + half*24*ldw}'])
            for i in range(3):
                items.append([f'buffer_load_dwordx4 v{regs[i]}, {srd(S)}, s{sSOFF} offen offset:{i*1024} lds'])
        return Stage(addr, 24576, items, name)
    g1 = {}; g2 = {}
    for p in range(6):
        for k in range(3):
            g1[p, k] = ring.add(mk(len(ring.stages), 80 + k, p*128, 9216, vD, S_W1, f'w1 p{p} k{k}'))
    order2 = [(0, 0), (1, 0), (0, 1), (1, 1)] + [(i, k) for i in range(2, 9) for k in range(2)]
    for (i, k) in order2:
        g2[i, k] = ring.add(mk(len(ring.stages), sQ + i, k*192*1152, 1152, vE, S_W2, f'w2 slot{i} k{k}'))
    ring.reserved = [(XA + 67584, XEND)]
    ring.maxahead = 4
    ring.barrier()
    stamp(e, 'barrier1')
    ring.pump(4)
    e(f'v_mov_b32 v{TMP+17}, 1')
    e(f'buffer_store_dword v{TMP+17}, v{TMP+16}, {srd(S_DBG)}, s{sRDY} offen sc1')
    su = [f's_mul_i32 s{sB2}, s{sMY}, {384*1152}', f's_mul_i32 s{sT1}, s{sWAVE}, {48*1152}', f's_add_u32 s{sB2}, s{sB2}, s{sT1}',
          f's_add_u32 s{sT0}, s{sV}, 1', f's_sub_u32 s{sT1}, s{sV}, 9', f's_mul_i32 s{sT1}, s{sT1}, 3',
          f's_cmp_lt_u32 s{sV}, 9', f's_cselect_b32 s{sT0}, s{sT0}, s{sT1}', f's_lshl_b32 s{sT0}, s{sT0}, 7']
    for i in range(9):
        su += [f's_cmp_ge_u32 s{sT0}, {9*128}', f's_cselect_b32 s{sT0}, 0, s{sT0}', f's_add_u32 s{sQ+i}, s{sB2}, s{sT0}', f's_add_u32 s{sT0}, s{sT0}, 128']
    su += [f's_mul_i32 s{sPS}, s{sTILE}, {P_TILE}', f's_lshl_b32 s{sT1}, s{sWAVE}, 12', f's_add_u32 s{sPS}, s{sPS}, s{sT1}',
           f's_mul_i32 s{sT1}, s{sV}, {P_Q}', f's_add_u32 s{sPB}, s{sPS}, s{sT1}',
           f's_cmp_lt_u32 s{sV}, 9', f's_cselect_b32 s{sFLQ}, s{sFLG}, {OOB}',
           f's_lshl_b32 s{sT1}, s{sV}, 14', f's_add_u32 s{sPS}, s{sPS}, s{sT1}',
           f's_mul_i32 s{sT1}, s{sB2}, {P_Q // 128}', f's_sub_u32 s{sPS}, s{sPS}, s{sT1}']
    tch = []
    if C.w1touch == 3:
        tch = [f's_and_b32 s{sT1}, s{sTILE}, 7', f's_mul_i32 s98, s{sT1}, {72*9216}', f's_mul_i32 s{sT1}, s{sMY}, 768', f's_add_u32 s98, s98, s{sT1}', 'v_accvgpr_read_b32 v15, a151', 's_nop 0']
        tch += [f'buffer_load_dword v{TMP+28}, v15, {srd(S_W1)}, s98 offen offset:{o_}' for o_ in (128, 384)[:C.w1n]]
    ln_finish(e, xs, ring, tch, maxpump=C.f_maxpump)
    ring.reserved = []

    mf = []; gap = defaultdict(list)
    st_ = {}
    CL = C.c_lead
    spread(gap, group_scc(su), 2, 90)
    for p in range(6):
        accs = [ACC0 + 32*(p % 2), ACC0 + 32*(p % 2) + 16]
        start = len(mf)
        for ks in range(36):
            kb, v = divmod(ks, 4)
            st = g1[p, kb // 3]
            off = ring.stages[st].addr + (kb % 3)*8192 + v*1024
            if p == 0 and ks % 2 == 0 and ks // 2 + CL < 18:
                j = ks // 2 + CL
                D = ACC0 + 32 + 16*(j % 2)
                mf += center_mf(j, D)
                spread(gap, center_cvt(j, D), len(mf) + 2, len(mf) + 6)
            for tt in range(2):
                mf.append(dict(stage=st, reads=tr_reads(vTR[tt], off, 512), b=X(ks), acc=f'v[{accs[tt]}:{accs[tt]+15}]', first=(ks == 0)))
        end = len(mf)
        ops = silu_ops(accs[0], H0 + 16*p) + silu_ops(accs[1], H0 + 16*p + 8)
        spread(gap, ops, end + 1, end + (70 if p < 5 else 62))
        if C.w1touch == 1 and p + C.w1ahead < 6:
            if p == 0:
                gap[start] += [f's_and_b32 s{sT1}, s{sTILE}, 7', f's_mul_i32 s98, s{sT1}, {72*9216}', f's_mul_i32 s{sT1}, s{sMY}, 768', f's_add_u32 s98, s98, s{sT1}', 'v_accvgpr_read_b32 v15, a150']
            gap[start + 1].append(f'buffer_load_dword v{TMP+28}, v15, {srd(S_W1)}, s98 offen offset:{128*(p + C.w1ahead)}')
        if C.w1touch == 2 and p in (0, 1):
            if p == 0:
                gap[start] += [f's_and_b32 s{sT1}, s{sTILE}, 7', f's_mul_i32 s98, s{sT1}, {72*9216}', f's_mul_i32 s{sT1}, s{sMY}, 768', f's_add_u32 s98, s98, s{sT1}', 'v_accvgpr_read_b32 v15, a151']
            gap[start + 1].append(f'buffer_load_dword v{TMP+28}, v15, {srd(S_W1)}, s98 offen offset:{256*(p + 1)}')
        if p == 1:
            gap[start + 4] += [f's_and_b32 s{sT1}, s{sTILE}, 7', f's_mul_i32 s{sT1}, s{sT1}, {48*1152}', f's_mul_i32 s75, s{sMY}, {384*1152}',
                               f's_add_u32 s75, s75, s{sT1}', f'v_accvgpr_read_b32 v{TMP+27}, a149',
                               f's_lshr_b32 s76, s2, 3', f's_sub_u32 s76, s76, {8 if C.attn_first else 0}', f's_mul_i32 s76, s76, {216*128}']
            NL = C.tl
            tl = [(S_W2, 75)] * (108 // NL if C.w2touch else 0) + [(S_WO, 76)] * (54 // NL if C.wotouch else 0)
            for n, (S_, sr) in enumerate(tl):
                gap[start + 6 + n * (C.t_span // len(tl))] += [f'buffer_load_dword v{TMP+28}, v{TMP+27}, {srd(S_)}, s{sr} offen', f's_add_u32 s{sr}, s{sr}, {4*NL*128}']
        if p in (0, 5): gap[end - 1].append(lambda: stamp(e, 'gemm1 panel'))
    G2 = len(mf)

    def acc2(i):
        if i == 8: return [YACC, YACC + 16]
        b = X0 + 32*(i % 2); return [b, b + 16]
    def store_ops(accs, i):
        tb = X0 + 64 + 16*(i % 2)
        ops = [f's_mul_i32 s{sST}, s{sQ+i}, {P_Q // 128}', f's_add_u32 s{sST}, s{sST}, s{sPS}']
        for part in range(4):
            tt, u = divmod(part, 2)
            a = accs[tt] + 8*u; T = tb + 4*part
            for k in range(4): ops.append(f'v_cvt_pk_bf16_f32 v{T+k}, v{a+2*k}, v{a+2*k+1}')
            ops.append((f'buffer_store_dwordx4 v[{T}:{T+3}], v{vL16}, {srd(S_WS)}, s{sST} offen offset:{part*1024} sc1', 30))
        ops.append((lambda: st_.__setitem__(('st', i), e.vm_tok()), 0))
        return ops
    vFV, vZ, vPZ = TMP + 16, TMP + 17, TMP + 15
    def flag_ops(i):
        def f():
            e.wait(vm=st_['st', i])
            e(f'v_mov_b32 v{vFV}, {i+1}')
            e(f'buffer_store_dword v{vFV}, v{vZ}, {srd(S_WS)}, s{sMYF} offen sc1')
        return f
    rl = f'buffer_load_dword v{vPZ}, v{vZ}, {srd(S_DBG)}, s{sRDY} offen sc1'
    def rdy1():
        e(f'v_mov_b32 v{vZ}, 0')
        e(f's_lshl_b32 s{sRDY}, s{sTILE}, 4')
        e(rl); st_['zp'] = e.vm_tok()
    gap[G2 - 100].append(rdy1)
    gap[G2 - 30].append(lambda: poll_check(e, rl, vPZ, st_['zp'], 1, sT1))

    vW = [TMP+0, TMP+1, TMP+2, TMP+3, TMP+4]
    vTW = [[TMP+5, TMP+6, TMP+7], [TMP+8, TMP+9, TMP+10]]
    vXO, vL4, vNEED, vFL = TMP+11, TMP+12, TMP+13, TMP+14
    sLW5 = 98; sWOB = sB1; sOB = 73; sXO = 74
    wst = []
    def wo_stage(idx, g):
        addr = (idx % NS) * 24576
        items = []
        for i in range(5):
            it = [f's_add_u32 m0, s{sLW5}, {addr + 1024*i}']
            it.append((f's_add_u32 s{sSOFF}, s{sROLE}, {g}\ns_and_b32 s{sSOFF}, s{sSOFF}, 3\ns_mul_i32 s{sSOFF}, s{sSOFF}, {144*1152}\ns_add_u32 s{sSOFF}, s{sSOFF}, s{sWOB}' if C.o_rot else f's_add_u32 s{sSOFF}, s{sWOB}, {g*144*1152}') if i == 0 else 's_nop 0')
            it.append(f'buffer_load_dwordx4 v{vW[i]}, {srd(S_WO)}, s{sSOFF} offen lds')
            items.append(it)
        return Stage(addr, 20480, items, f'wo g{g}')
    for g in range(4): wst.append(ring.add(wo_stage(len(ring.stages), g)))
    fl = f'buffer_load_dword v{vFL}, v{vL4}, {srd(S_WS)}, s{sFLQ} offen sc1'
    def mask_check(tok, mask):
        n = _lbl[0]; _lbl[0] += 1
        e.wait(vm=tok)
        body = f'v_cmp_ge_u32 vcc, v{vFL}, v{vNEED}\ns_nop 1\ns_and_b32 s{sT0}, vcc_lo, {mask}\ns_cmp_eq_u32 s{sT0}, {mask}\ns_cbranch_scc0 L_sp{n}'
        e(body)
        e(f'L_ok{n}:')
        TAILCODE.append(f'L_sp{n}:\ns_sleep 1\n{fl}\ns_waitcnt vmcnt(0)\n{body}\ns_branch L_ok{n}')

    srcs = [('o', a_) for a_ in range(8)] + [('n', m) for m in range(3)]
    srcs.sort(key=lambda x: x[1] if x[0] == 'o' else 3*x[1] + 2)
    sreg = [64, 65, 66, 67, 68, 69, 70, 71, 75, 76, 77]
    batches = [(sl, n) for sl, n in ((C.b1_slot, C.b1_n), (C.b2_slot, C.b2_n), (C.b3_slot, C.b3_n)) if n]
    nIn = sum(n for _, n in batches)
    ibuf = [96, 112, 208, 128]
    bmask = [83, 94, 95]
    pt = {}
    quiet = []
    def PBq(n, part):
        if n < nIn: r = ibuf[n % 4] + 4*part; return f'a[{r}:{r+3}]'
        bt = ([H0 + 16*i for i in range(6)] + ibuf + [None])[n - nIn]
        if bt is None: r = TMP + 16 + 4*part; return f'v[{r}:{r+3}]'
        return f'a[{bt+4*part}:{bt+4*part+3}]'
    def pload(n):
        for part in range(4):
            e(f'buffer_load_dwordx4 {PBq(n, part)}, v{vL16}, {srd(S_WS)}, s{sreg[n]} offen offset:{part*1024} sc1')
        pt[n] = e.vm_tok()
    def ident_mf(n, first):
        out = []
        for part in range(4):
            tt, u = divmod(part, 2)
            out.append(dict(stage=None, a=f'a[{IDA+4*u}:{IDA+4*u+3}]', b=PBq(n, part), acc=f'v[{YACC+16*tt}:{YACC+16*tt+15}]', first=(first and u == 0)))
        out[0]['prewait'] = lambda: e.wait(vm=pt[n])
        return out
    slot_start = {}
    yinit = False
    for (i, k) in order2:
        st = g2[i, k]
        if k == 0: slot_start[i] = len(mf)
        for kk in range(12):
            kb, v = divmod(kk, 4)
            off = ring.stages[st].addr + kb*8192 + v*1024
            hb = H0 + 16*(3*k + kb) + 4*v
            for tt in range(2):
                a = acc2(i)[tt]
                mf.append(dict(stage=st, reads=tr_reads(vTR[tt], off, 512), b=f'a[{hb}:{hb+3}]', acc=f'v[{a}:{a+15}]', first=(k == 0 and kk == 0 and not (i == 8 and yinit))))
        if i == 8: yinit = True
        if k == 1:
            end = len(mf)
            if i < 8:
                so = store_ops(acc2(i), i)
                if C.smooth and 1 <= i < 7:
                    g_ = end + 2
                    gap[g_ - 1] += so[:2]
                    for part in range(4):
                        blk = so[2 + 5*part: 7 + 5*part]
                        for k_ in range(4): gap[g_ + k_].append(blk[k_])
                        gap[g_ + 6].append(blk[4][0])
                        g_ += 7
                    gap[g_ - 1].append(so[-1][0])
                else:
                    spread(gap, so, end + 1, end + (C.st_span if i < 7 else C.st_span7))
                if i >= C.flag_from: gap[end + (C.flag_at if i < 7 else C.flag_at7)].append(flag_ops(i))
            if C.slotstamps and i < 8: gap[end - 1].append(lambda i=i: stamp(e, f'slot{i}'))
            n0 = 0
            for bi, (sl, n) in enumerate(batches):
                if min(sl + 1, 8) == i:
                    c = slot_start[sl] + (C.b_off if sl < 8 else C.b_off8)
                    gap[c - C.poll_dist].append(lambda bi=bi: (e(fl), st_.__setitem__(('bp', bi), e.vm_tok())))
                    gap[c].append(lambda bi=bi: mask_check(st_['bp', bi], f's{bmask[bi]}'))
                    for j in range(n): gap[c + 1 + 2*j].append(lambda j=j, n0=n0: pload(n0 + j))
                    quiet.append((c - C.q_pre, c + C.q_len))
                    if sl < 8:
                        for j in range(n):
                            mf.extend(ident_mf(n0 + j, not yinit)); yinit = True
                n0 += n
    END2 = len(mf)
    w = TMP + 19
    ops = [f'v_accvgpr_read_b32 v{vW[i]}, a{144+i}' for i in range(5)] + [f'v_accvgpr_read_b32 v{TMP+5+i}, a{132+i}' for i in range(8)]
    ops += [f'v_accvgpr_read_b32 v{w}, a140', f'v_accvgpr_read_b32 v{w+2}, a141', f'v_add_u32 v{w}, s{sV}, v{w}',
            f'v_subrev_u32 v{w+1}, 9, v{w}', f'v_min_u32 v{w}, v{w}, v{w+1}', f'v_and_b32 v{w}, v{w}, v{w+2}', f'v_add_u32 v{vNEED}, 1, v{w}',
            f's_mul_i32 s{sLW5}, s{sWAVE}, 5120', f's_min_u32 s{sWOB}, s{sV}, 8', f's_lshl_b32 s{sWOB}, s{sWOB}, 7',
            f's_add_u32 s{sXO}, s{sWOB}, s{sXOFF}', f's_add_u32 s{sOB}, s{sXOFF}, {WS_O}']
    nE = C.tail_early
    ops += ['s_mov_b32 s78, 0', 's_mov_b32 s79, 0xf000' if C.o_with_late else 's_mov_b32 s79, 0'] + [f's_mov_b32 s{m}, 0' for m in bmask]
    ops += [(f's_cmp_lt_u32 s{sV}, 9\ns_cselect_b32 s{sPB}, s{sPB}, {OOB}\ns_cselect_b32 s{sT0}, -1, 0\nv_and_b32 v{vNEED}, s{sT0}, v{vNEED}', 16)]
    def mreg(n):
        n0 = 0
        for bi, (sl, nn) in enumerate(batches):
            if n < n0 + nn: return bmask[bi]
            n0 += nn
        return 78 if n < nE else 79
    for n, (kind, v) in enumerate(srcs):
        sj = sreg[n]
        if kind == 'o':
            o_ = [f's_add_u32 s{sj}, s{sV}, {8 - v}', f's_cmp_ge_u32 s{sj}, 9', f's_cselect_b32 s{sT0}, 9, 0', f's_sub_u32 s{sj}, s{sj}, s{sT0}']
        else:
            o_ = [f's_mul_i32 s{sj}, s{sV}, 86', f's_lshr_b32 s{sj}, s{sj}, 8', f's_add_u32 s{sj}, s{sj}, {3 - v}', f's_cmp_ge_u32 s{sj}, 3',
                  f's_cselect_b32 s{sT0}, -6, -9', f's_sub_u32 s{sj}, s{sj}, s{sT0}']
        o_ += [f's_bitset1_b32 s{mreg(n)}, s{sj}', f's_lshl_b32 s{sj}, s{sj}, 14', f's_add_u32 s{sj}, s{sj}, s{sPB}']
        k_ = next(n_ for n_, x in enumerate(o_) if x.startswith('s_cmp'))
        ops += o_[:k_] + [('\n'.join(o_[k_:k_+3]), 12)] + o_[k_+3:]
    if C.smooth and not batches:
        free = [g_ for sl in range(2, 6) for g_ in range(slot_start[sl] + 31, slot_start[sl] + 48)]
        free = [g_ for g_ in free if g_ < slot_start[6] - 12]
        for n_, x in enumerate(ops): gap[free[n_ * len(free) // len(ops)]].append(x[0] if isinstance(x, tuple) else x)
    else:
        spread(gap, ops, G2 + 64, min(slot_start[6] - 12, slot_start[batches[0][0]] + C.b_off - C.poll_dist - 2) if batches else slot_start[6] - 12)
    XR = 144
    for part in range(4):
        gap[slot_start[6] + 26 + 5*part].append(f'buffer_load_dwordx4 a[{XR+4*part}:{XR+4*part+3}], v{vXO}, {srd(S_X)}, s{sXO} offen offset:{16*part}')
    gap[END2 - C.poll_e].append(lambda: (e(fl), st_.__setitem__('p1', e.vm_tok())))
    center_block(e, range(CL), [ACC0 + 32, ACC0 + 48], fill=xs['rest'] + [f'v_accvgpr_write_b32 a241, v{LNC}', f'v_sub_f32 v{LNC+1}, 0, v{LNC}'], ring=ring)
    pre = []
    if C.ct_every: e(f'v_min_u32 v15, {C.ct_lines - 1}, v{vLANE}\nv_lshlrev_b32 v15, 7, v15')
    run_stream(e, ring, mf, gap, FR, pre=pre, pre_first=True, quiet=quiet, dma_relax=C.dma_relax, ctouch=jit_touch(e, 15, TMP + 29), smooth=C.smooth)
    stamp(e, 'gemm2 done')
    e(f's_cmp_lt_u32 s{sV}, 9')
    e('s_cbranch_scc0 L_nonowner')
    sv = _stamp_n[0]
    def ident(n):
        im = ident_mf(n, False)
        im[0]['prewait']()
        for m in im: e(f"v_mfma_f32_32x32x16_bf16 {m['acc']}, {m['a']}, {m['b']}, {m['acc']}")
    oregs = [ACC0 + 32 + 4*i for i in range(8)] + [X0 + 128 + 4*i for i in range(4)] + [X0 + 4*i for i in range(24)]
    def OQ(ks): r = oregs[ks]; return f'v[{r}:{r+3}]'
    def oload(ks):
        j, s_ = divmod(ks, 9)
        if s_ == 0:
            if C.o_rot: e(f's_add_u32 s{sT3}, s{sROLE}, {j}\ns_and_b32 s{sT3}, s{sT3}, 3\ns_mul_i32 s{sT3}, s{sT3}, 9216\ns_add_u32 s{sT3}, s{sT3}, s{sOB}')
            else: e(f's_add_u32 s{sT3}, s{sOB}, {9216*j}')
        elif s_ % 4 == 0: e(f's_add_u32 s{sT3}, s{sT3}, 4096')
        e(f'buffer_load_dwordx4 {OQ(ks)}, v{vL16}, {srd(S_WS)}, s{sT3} offen offset:{1024*(s_ % 4)} sc1')
        st_['o', ks] = e.vm_tok()
    ring.pump_all()
    n1 = C.tail_n1
    pend = [n for n in range(nIn) if n >= nIn - (batches[-1][1] if batches and batches[-1][0] == 8 else 0)]
    mask_check(st_['p1'], 's78')
    stamp(e, 'early ready')
    for n in range(nIn, n1):
        if n == nE: mask_check(p2, 's79')
        if n - nIn == 6:
            while pend and pend[0] < nIn: ident(pend.pop(0))
        pload(n); pend.append(n)
        if n == min(n1, nE) - C.poll_l or n == n1 - 1: e(fl); p2 = e.vm_tok()
        if len(pend) > 3: ident(pend.pop(0))
    mask_check(p2, 0xf000)
    stamp(e, 'o ready')
    NPRE = C.o_pre
    for ks in range(NPRE): oload(ks)
    for n in pend: ident(n)
    GT = TMP + 16
    mf = []; gap = defaultdict(list)
    for g_ in range(4):
        st = wst[g_]
        for s in range(9):
            ks = 9*g_ + s
            off = ring.stages[st].addr + 1024*s
            for tt in range(2):
                a = SACC + 16*tt
                d = dict(stage=st, reads=tr_reads(vTW[tt], off, 512), b=OQ(ks), acc=f'v[{a}:{a+15}]', first=(ks == 0))
                if tt == 0: d['prewait'] = (lambda ks=ks: e.wait(vm=st_['o', ks]))
                mf.append(d)
            if ks + NPRE < 36: gap[(2*ks*C.o_fast) // 4].append(lambda ks=ks: oload(ks + NPRE))
    lastld = (2*(35 - NPRE)*C.o_fast) // 4
    gap[max(0, lastld - C.poll3)].append(lambda: (e(fl), st_.__setitem__('p3', e.vm_tok())))
    for n in range(n1, nE): gap[lastld + 1 + (n - n1)].append(lambda n=n: pload(n))
    gl = lastld + 1 + (nE - n1)
    if n1 <= nE:
        gap[gl].append(lambda: mask_check(st_['p3'], 's79'))
        for n in range(nE, 11): gap[gl + 1 + n - nE].append(lambda n=n: pload(n))
    XF = ACC0 + 32
    xo = []
    for i in range(16):
        xo += [f'v_accvgpr_read_b32 v{TMP+(i%2)}, a{XR+i}', f'v_lshlrev_b32 v{XF+2*i}, 16, v{TMP+(i%2)}', f'v_and_b32 v{XF+2*i+1}, s{sMASK}, v{TMP+(i%2)}']
    spread(gap, xo, 40, 72)
    ypre = n1 == 11
    if ypre:
        ep = []
        for i0 in range(0, 32, 4):
            for i in range(4): ep.append(f'v_exp_f32 v{GT+i}, -v{YACC+i0+i}')
            for i in range(4): ep.append(f'v_add_f32 v{GT+i}, 1.0, v{GT+i}')
            for i in range(4): ep.append(f'v_rcp_f32 v{GT+i}, v{GT+i}')
            for i in range(4): ep.append(f'v_mul_f32 v{YACC+i0+i}, v{YACC+i0+i}, v{GT+i}')
        spread(gap, ep, 1, 60)
    run_stream(e, ring, mf, gap, FR)
    stamp(e, 'wo done')
    for n in range(n1, 11): ident(n)
    stamp(e, 'y done')
    e(f'v_mov_b32 v{TMP}, 1.0')
    e(f'v_accvgpr_read_b32 v{TMP+2}, a241')
    assert not ypre
    for part in range(4):
        y = YACC + 8*part; s = SACC + 8*part; xf = XF + 8*part; tt = X0 + 8*part
        if ypre:
            for i in range(4): e(f'v_pk_fma_f32 v[{xf+2*i}:{xf+2*i+1}], v[{s+2*i}:{s+2*i+1}], v[{y+2*i}:{y+2*i+1}], v[{xf+2*i}:{xf+2*i+1}]')
        else:
            for i in range(4): e(f'v_pk_mul_f32 v[{y+2*i}:{y+2*i+1}], v[{y+2*i}:{y+2*i+1}], v[{TMP+2}:{TMP+3}] op_sel_hi:[1,0]')
            for i in range(8): e(f'v_exp_f32 v{tt+i}, -v{y+i}')
            for i in range(4): e(f'v_pk_mul_f32 v[{s+2*i}:{s+2*i+1}], v[{s+2*i}:{s+2*i+1}], v[{y+2*i}:{y+2*i+1}]')
            for i in range(4): e(f'v_pk_add_f32 v[{tt+2*i}:{tt+2*i+1}], v[{tt+2*i}:{tt+2*i+1}], v[{TMP}:{TMP+1}] op_sel_hi:[1,0]')
            for i in range(8): e(f'v_rcp_f32 v{tt+i}, v{tt+i}')
            for i in range(4): e(f'v_pk_fma_f32 v[{xf+2*i}:{xf+2*i+1}], v[{s+2*i}:{s+2*i+1}], v[{tt+2*i}:{tt+2*i+1}], v[{xf+2*i}:{xf+2*i+1}]')
        for i in range(4): e(f'v_cvt_pk_bf16_f32 v{tt+i}, v{xf+2*i}, v{xf+2*i+1}')
        e(f'buffer_store_dwordx4 v[{tt}:{tt+3}], v{vXO}, {srd(S_OUT)}, s{sXO} offen offset:{16*part}')
    stamp(e, 'out issued')
    if C.stamps: e.wait_all()
    stamp_flush(e)
    e('s_endpgm')
    e('L_nonowner:')
    _stamp_n[0] = sv
    e('s_nop 15')
    for x in store_ops(acc2(8), 8):
        x = x[0] if isinstance(x, tuple) else x
        x() if callable(x) else e(x)
    e.wait_all()
    flag_ops(8)()
    if C.stamps: e.wait_all()
    stamp_flush(e)
    e('s_endpgm')
```
